```python
import torch

def _softmax(x, axis=-1):
    return torch.softmax(x, dim=axis)
def _gelu(x):
    return torch.nn.functional.gelu(x, approximate="tanh")
def _silu(x):
    return torch.nn.functional.silu(x)
def _sigmoid(x):
    return torch.sigmoid(x)
def _layernorm(x, axis=-1, eps=1e-5):
    m = x.mean(dim=axis, keepdim=True)
    v = x.var(dim=axis, keepdim=True, unbiased=False)
    return (x - m) / torch.sqrt(v + eps)
def _scatter_add(tgt, idx, src, axis=0):
    return tgt.clone().index_add_(axis, idx, src)
def _segment_sum(src, seg, n):
    out = torch.zeros((n,) + src.shape[1:], dtype=src.dtype)
    return out.index_add_(0, seg, src)
def _pad(x, pw):
    flat = tuple(v for pair in reversed(pw) for v in pair)
    return torch.nn.functional.pad(x, flat)

kernel_name = 'sequential_preLN__softmax_full_mha__dense_activation_silu__prompt'

def setup_inputs():

    _w = (lambda a: (lambda t: t.to(torch.bfloat16) if t.is_floating_point() else t)(torch.as_tensor(a)))
    def _A_setup():
        B, S, D = 1, 2048, 448
        return {
            "x": _w((lambda *s: torch.randn(*s, dtype=torch.bfloat16) * 0.05)(B, S, D)),
            "wqkv": _w((lambda *s: torch.randn(*s, dtype=torch.bfloat16) * 0.05)(D, 3 * D)),
            "wo": _w((lambda *s: torch.randn(*s, dtype=torch.bfloat16) * 0.05)(D, D)),
        }
    _A_in = _A_setup()

    def _B_setup():
        B, S, D, F = 1, 2048, 448, 1792
        return {
            "x": _w((lambda *s: torch.randn(*s, dtype=torch.bfloat16) * 0.05)(B, S, D)),
            "w1": _w((lambda *s: torch.randn(*s, dtype=torch.bfloat16) * 0.8)(D, F) * (D ** -0.5)),
            "w2": _w((lambda *s: torch.randn(*s, dtype=torch.bfloat16) * 0.2)(F, D) * (F ** -0.5)),
        }
    _B_in = _B_setup()

    return {
        "A_x": _A_in["x"],
        "A_wqkv": _A_in["wqkv"],
        "A_wo": _A_in["wo"],
        "B_x": _B_in["x"],
        "B_w1": _B_in["w1"],
        "B_w2": _B_in["w2"],
    }

def reference(A_x, A_wqkv, A_wo, B_x, B_w1, B_w2):
    def _A_ref(x, wqkv, wo):
        B, S, D = x.shape
        H = 16; Dh = D // H
        qkv = (lambda x, *d: x.permute(*d))((x @ wqkv).reshape(B, S, 3, H, Dh), 2, 0, 3, 1, 4)
        q, k, v = qkv[0], qkv[1], qkv[2]
        scale = Dh ** -0.5
        scores = torch.einsum("bhqd,bhkd->bhqk", q, k) * scale
        p = _softmax(scores, axis=-1)
        o = torch.einsum("bhqk,bhkd->bhqd", p, v)
        return (lambda x, *d: x.permute(*d))(o, 0, 2, 1, 3).reshape(B, S, D) @ wo

    def _B_ref(x, w1, w2):
        h = torch.einsum("bsd,df->bsf", x, w1)
        h = _silu(h)
        out = torch.einsum("bsf,fd->bsd", h, w2)
        return out

    x = A_x
    h = x + _A_ref(_layernorm(x, axis=-1), A_wqkv, A_wo)
    h2 = h + _B_ref(_layernorm(h, axis=-1), B_w1, B_w2)
    return h2
```

```python
import sys, math, struct

S, D, H, DH, F = 2048, 448, 16, 28, 1792
MB = 1 << 20
WS_Q, WS_K, WS_V, WS_O, WS_H, WS_ST, WS_F = 0, 2 * MB, 4 * MB, 6 * MB, 8 * MB, 10 * MB, 12 * MB
WS_WT = 20 * MB
WS_WO, WS_W1, WS_W2 = WS_WT, WS_WT + 224 * 2048, WS_WT + 1008 * 2048
WS_CS = 24 * MB
WS_SIZE = 25 * MB


def f32bits(x):
    return struct.unpack("<I", struct.pack("<f", x))[0]


class Asm:
    def __init__(self):
        self.L = []

    def __call__(self, s):
        for line in s.strip("\n").split("\n"):
            self.L.append("    " + line.strip())

    def label(self, s):
        self.L.append(s + ":")

    def raw(self, s):
        self.L.append(s)

    def nop(self, n):
        while n > 0:
            k = min(n, 16)
            self(f"s_nop {k-1}")
            n -= k

    def text(self):
        return "\n".join(self.L) + "\n"


STAMP = False
STAMP_WG = 0
class Stamps:
    def __init__(self, a):
        self.a = a; self.n = 0
    def __call__(self):
        if not STAMP: return
        self.a(f"s_memtime s[{64+2*self.n}:{65+2*self.n}]")
        self.a("s_waitcnt lgkmcnt(0)")
        self.n += 1
        assert self.n <= 16
    def dump(self, wave_sgpr, tmpv=1):
        if not STAMP: return
        a = self.a
        self()
        lab = f"L_nodump_{len(a.L)}"
        a(f"s_cmp_lg_u32 s2, {STAMP_WG}")
        a(f"s_cbranch_scc1 {lab}")
        a(f"s_cmp_lg_u32 s{wave_sgpr}, 0")
        a(f"s_cbranch_scc1 {lab}")
        a("s_load_dwordx2 s[60:61], s[0:1], 56")
        a("s_waitcnt lgkmcnt(0)")
        a("s_mov_b32 s62, 256")
        a("s_mov_b32 s63, 0x00020000")
        a(f"v_mov_b32 v{tmpv}, 0")
        for i in range(self.n):
            a(f"s_sub_u32 s{64+2*i+1}, s{64+2*i}, s64")
            a(f"v_mov_b32 v{tmpv+1}, s{64+2*i+1}")
            a(f"buffer_store_dword v{tmpv+1}, v{tmpv}, s[60:63], 0 offen offset:{4*i}")
            a("s_nop 1")
        a("s_waitcnt vmcnt(0)")
        a.label(lab)


def vr(b, n=4):
    return f"v[{b}:{b+n-1}]"


def ar(b, n=16):
    return f"a[{b}:{b+n-1}]"


def srd(a, s, ptr_s, size):
    a(f"""s_mov_b32 s{s}, s{ptr_s}
    s_mov_b32 s{s+1}, s{ptr_s+1}
    s_mov_b32 s{s+2}, {size}
    s_mov_b32 s{s+3}, 0x00020000""")


def khead(a, name, nwg):
    a.raw(f".globl {name}")
    a.raw(".p2align 8")
    a.raw(f".type {name},@function")
    a.label(name)
    a(f"s_cmp_ge_u32 s2, {nwg}")
    a(f"s_cbranch_scc1 L_{name}_done")


def ktail(a, name):
    a.label(f"L_{name}_done")
    a("s_endpgm")


def kdesc(name, vgpr, agpr, sgpr=96):
    acc = (vgpr + 3) // 4 * 4
    nfv = acc + agpr if agpr else vgpr
    return f""".p2align 6
.amdhsa_kernel {name}
  .amdhsa_next_free_vgpr {nfv}
  .amdhsa_next_free_sgpr {sgpr}
  .amdhsa_accum_offset {acc}
  .amdhsa_group_segment_fixed_size 0
  .amdhsa_kernarg_size 72
  .amdhsa_user_sgpr_count 2
  .amdhsa_user_sgpr_kernarg_segment_ptr 1
  .amdhsa_system_sgpr_workgroup_id_x 1
.end_amdhsa_kernel
"""


def bf16_round(a, v, tmp):
    a(f"v_cvt_pk_bf16_f32 v{tmp}, v{v}, v{v}")
    a(f"v_lshlrev_b32 v{v}, 16, v{tmp}")


def half_sum(a, v, t):
    a(f"v_mov_b32 v{t}, v{v}")
    a.nop(2)
    a(f"v_permlane32_swap_b32 v{v}, v{t}")
    a.nop(1)
    a(f"v_add_f32 v{v}, v{v}, v{t}")


def ln_stats(a, vsum, vsq, vrstd, vnmr, t0, t1):
    a(f"v_mul_f32 v{vsum}, {hex(f32bits(1.0/D))}, v{vsum}")
    a(f"v_mul_f32 v{vsq}, {hex(f32bits(1.0/D))}, v{vsq}")
    a(f"v_fma_f32 v{vsq}, -v{vsum}, v{vsum}, v{vsq}")
    a(f"v_max_f32 v{vsq}, 0, v{vsq}")
    bf16_round(a, vsum, t0)
    bf16_round(a, vsq, t0)
    a(f"v_add_f32 v{vsq}, {hex(f32bits(1e-5))}, v{vsq}")
    bf16_round(a, vsq, t0)
    a(f"v_sqrt_f32 v{vsq}, v{vsq}")
    a.nop(1)
    bf16_round(a, vsq, t0)
    a(f"v_rcp_f32 v{vrstd}, v{vsq}")
    a.nop(1)
    a(f"v_mul_f32 v{vnmr}, v{vsum}, v{vrstd}")
    a(f"v_sub_f32 v{vnmr}, 0, v{vnmr}")


K1_LDS_CS = 0
K1_LDS_RS = 512
K1_LDS_W = 2048
K1_LDS = K1_LDS_W + 448 * 192


def gen_k1(a):
    name = "qkv_kernel"
    khead(a, name, 256)
    st0 = Stamps(a)
    st0()
    a("""s_load_dwordx4 s[4:7], s[0:1], 0
    s_load_dwordx2 s[24:25], s[0:1], 64
    v_lshrrev_b32 v1, 6, v0
    v_and_b32 v0, 63, v0""")
    a("v_readfirstlane_b32 s30, v1")
    a("""s_and_b32 s26, s2, 7
    s_lshr_b32 s27, s2, 3
    s_lshr_b32 s28, s26, 1
    s_lshl_b32 s28, s28, 2
    s_and_b32 s29, s27, 3
    s_add_u32 s28, s28, s29
    s_and_b32 s29, s26, 1
    s_lshl_b32 s29, s29, 3
    s_lshr_b32 s27, s27, 2
    s_add_u32 s29, s29, s27""")
    a("s_mul_i32 s31, s29, 3")
    a("s_lshl_b32 s32, s28, 2")
    a("s_add_u32 s32, s32, s30")
    a("""v_and_b32 v2, 31, v0
    v_lshrrev_b32 v3, 5, v0
    s_lshl_b32 s33, s32, 5
    v_add_u32 v4, s33, v2
    v_mul_u32_u24 v4, 896, v4
    v_lshl_add_u32 v4, v3, 4, v4""")
    a("s_lshl_b32 s34, s30, 6")
    a("s_mul_i32 s35, s31, 56")
    for i in range(3):
        a(f"""v_add_u32 v5, s34, v0
        v_add_u32 v5, {i*256}, v5
        v_mul_u32_u24 v6, 43691, v5
        v_lshrrev_b32 v6, 19, v6
        v_mul_u32_u24 v7, 12, v6
        v_sub_u32 v7, v5, v7
        v_lshrrev_b32 v8, 2, v7
        v_and_b32 v7, 3, v7
        v_mul_u32_u24 v6, 2688, v6
        v_mul_u32_u24 v8, 56, v8
        v_lshl_add_u32 v6, v7, 4, v6
        v_add3_u32 v{10+i}, v6, v8, s35""")
    a("""v_and_b32 v5, 15, v0
    v_lshrrev_b32 v6, 2, v5
    v_and_b32 v7, 3, v5
    v_lshrrev_b32 v8, 4, v0
    v_and_b32 v8, 1, v8
    v_lshl_add_u32 v6, v3, 3, v6
    v_mul_u32_u24 v6, 192, v6
    v_lshl_add_u32 v6, v8, 5, v6
    v_lshl_add_u32 v13, v7, 3, v6
    v_add_u32 v13, 2048, v13
    v_add_u32 v14, 43008, v13""")
    a("""s_cmp_eq_u32 s30, 3
    s_cselect_b32 s36, 0, s30
    s_lshl_b32 s37, s36, 6
    v_add_u32 v15, s37, v13
    v_add_u32 v9, s37, v14""")
    a("s_waitcnt lgkmcnt(0)")
    srd(a, 8, 4, S * D * 2)
    srd(a, 12, 6, D * 3 * D * 2)
    srd(a, 16, 24, WS_SIZE)
    XB = 16
    AF = 128
    ACC = 160
    SUM0, SUM1, SQ0, SQ1, CS0, CS1 = 208, 209, 210, 211, 212, 213
    ONES = 214
    T0 = 216
    a("s_lshl_b32 s38, s30, 10")
    for c in range(7):
        for s in range(4 * c, 4 * c + 4):
            a(f"buffer_load_dwordx4 {vr(XB+4*s)}, v4, s[8:11], 0 offen offset:{32*s}")
        a(f"s_mov_b32 s39, {c*64*2688}")
        for i in range(3):
            a(f"s_add_u32 m0, s38, {K1_LDS_W+(c*3+i)*4096}")
            a("s_nop 0")
            a(f"buffer_load_dwordx4 v{10+i}, s[12:15], s39 offen lds")
    for r in (SUM0, SUM1, SQ0, SQ1, CS0, CS1):
        a(f"v_mov_b32 v{r}, 0")
    a(f"v_mov_b32 v{ONES}, 0x3f803f80")
    a("""s_cmp_ge_u32 s29, 11
    s_cbranch_scc1 L_k1_var2
    s_cmp_eq_u32 s29, 10
    s_cbranch_scc1 L_k1_var1""")

    def trread(step, buf):
        base, baseC = (13, 15) if step < 14 else (14, 9)
        off = (step % 14) * 3072
        for hd in range(3):
            r = AF + buf * 16 + hd * 4
            a(f"ds_read_b64_tr_b16 {vr(r,2)}, v{base} offset:{off+hd*64}")
            a(f"ds_read_b64_tr_b16 {vr(r+2,2)}, v{base} offset:{off+hd*64+768}")
        r = AF + buf * 16 + 12
        a(f"ds_read_b64_tr_b16 {vr(r,2)}, v{baseC} offset:{off}")
        a(f"ds_read_b64_tr_b16 {vr(r+2,2)}, v{baseC} offset:{off+768}")

    st0()
    if STAMP and "--drain" in sys.argv:
        a("s_waitcnt vmcnt(0)")
        a("s_barrier")
        st0()
    n0 = st0.n
    def body(var, types):
        st = Stamps(a); st.n = n0
        def chunk_wait(c):
            a(f"s_waitcnt vmcnt({(6-c)*7})")
            a("s_barrier")
            st()

        def stats(c):
            for s in range(4 * c, 4 * c + 4):
                for j in range(4):
                    x = XB + 4 * s + j
                    a(f"v_dot2c_f32_bf16 v{SUM0 + (j&1)}, v{x}, v{ONES}")
                    a(f"v_dot2c_f32_bf16 v{SQ0 + (j&1)}, v{x}, v{x}")
        chunk_wait(0)
        trread(0, 0)
        stats(0)
        for step in range(28):
            buf = step & 1
            nxt = step + 1
            if nxt < 28:
                if nxt % 4 == 0:
                    chunk_wait(nxt // 4)
                trread(nxt, buf ^ 1)
                a("s_waitcnt lgkmcnt(8)")
            else:
                a("s_waitcnt lgkmcnt(0)")
            csr = AF + buf * 16 + 12
            valu = []
            for j in range(4):
                valu.append(f"v_lshlrev_b32 v{T0+2*j}, 16, v{csr+j}")
                valu.append(f"v_and_b32 v{T0+2*j+1}, 0xffff0000, v{csr+j}")
            for j in range(4):
                valu.append(f"v_add_f32 v{CS0}, v{CS0}, v{T0+2*j}")
                valu.append(f"v_add_f32 v{CS1}, v{CS1}, v{T0+2*j+1}")
            for hd in range(3):
                wf = vr(AF + buf * 16 + hd * 4)
                xf = vr(XB + 4 * step)
                acc = vr(ACC + 16 * hd, 16)
                c = "0" if step == 0 else acc
                if types[hd] == "T":
                    a(f"v_mfma_f32_32x32x16_bf16 {acc}, {wf}, {xf}, {c}")
                else:
                    a(f"v_mfma_f32_32x32x16_bf16 {acc}, {xf}, {wf}, {c}")
                k = [5, 5, 6][hd]
                for _ in range(k):
                    a(valu.pop(0))
            assert not valu
            if nxt < 28 and nxt % 4 == 0:
                stats(nxt // 4)
        st()
        a.nop(3)
        a(f"v_add_f32 v{SUM0}, v{SUM0}, v{SUM1}")
        a(f"v_add_f32 v{SQ0}, v{SQ0}, v{SQ1}")
        a(f"v_add_f32 v{CS0}, v{CS0}, v{CS1}")
        half_sum(a, SUM0, T0)
        half_sum(a, SQ0, T0)
        half_sum(a, CS0, T0)
        RSTD, NMR = SUM1, SQ1
        ln_stats(a, SUM0, SQ0, RSTD, NMR, T0, T0 + 1)
        a(f"""s_lshl_b32 s40, s36, 7
        v_lshlrev_b32 v5, 2, v2
        v_add_u32 v6, s40, v5
        s_lshl_b32 s41, s30, 8
        v_add_u32 v7, s41, v5
        ds_write_b32 v6, v{CS0} offset:{K1_LDS_CS}
        ds_write_b32 v7, v{RSTD} offset:{K1_LDS_RS}
        ds_write_b32 v7, v{NMR} offset:{K1_LDS_RS+128}
        s_waitcnt lgkmcnt(0)
        s_barrier""")
        a(f"""v_lshlrev_b32 v6, 4, v3
        v_add_u32 v8, s41, v6
        v_lshlrev_b32 v12, 4, v0""")
        CSR = XB
        RA, RB = XB + 16, XB + 32
        OUT = XB + 48
        if "N" in types:
            for q in range(4):
                a(f"ds_read_b128 {vr(RA+4*q)}, v8 offset:{K1_LDS_RS+32*q}")
                a(f"ds_read_b128 {vr(RB+4*q)}, v8 offset:{K1_LDS_RS+128+32*q}")
        for hd in range(3):
            acc = ACC + 16 * hd
            a(f"""s_add_u32 s42, s31, {hd}
            s_lshr_b32 s43, s42, 4
            s_and_b32 s44, s42, 15
            s_lshl_b32 s45, s43, 21
            s_lshl_b32 s44, s44, 6
            s_add_u32 s44, s44, s32
            s_lshl_b32 s44, s44, 11
            s_add_u32 s45, s45, s44""")
            if types[hd] == "T":
                for q in range(4):
                    a(f"ds_read_b128 {vr(CSR+4*q)}, v6 offset:{K1_LDS_CS+hd*128+32*q}")
                sc = (DH ** -0.5) * math.log2(math.e)
                a(f"""s_cmp_eq_u32 s43, 0
                s_cselect_b32 s46, {hex(f32bits(sc))}, 1.0
                s_cselect_b32 s47, 0, 0x3f80
                v_mul_f32 v{T0}, s46, v{RSTD}
                v_mul_f32 v{T0+1}, s46, v{NMR}
                s_waitcnt lgkmcnt(0)""")
                for r in range(16):
                    a(f"v_mul_f32 v{CSR+r}, v{T0+1}, v{CSR+r}")
                    a(f"v_fma_f32 v{CSR+r}, v{acc+r}, v{T0}, v{CSR+r}")
                for j in range(8):
                    a(f"v_cvt_pk_bf16_f32 v{OUT+j}, v{CSR+2*j}, v{CSR+2*j+1}")
                a(f"""s_mov_b32 exec_lo, 0
                v_mov_b32 v{OUT+6}, s47
                v_mov_b32 v{OUT+7}, 0
                s_mov_b32 exec_lo, -1""")
            else:
                a(f"ds_read_b32 v{T0}, v5 offset:{K1_LDS_CS+hd*128}")
                a("s_waitcnt lgkmcnt(0)")
                for r in range(16):
                    a(f"v_mul_f32 v{CSR+r}, v{T0}, v{RB+r}")
                    a(f"v_fma_f32 v{CSR+r}, v{acc+r}, v{RA+r}, v{CSR+r}")
                for j in range(8):
                    a(f"v_cvt_pk_bf16_f32 v{OUT+j}, v{CSR+2*j}, v{CSR+2*j+1}")
                a("s_mov_b32 exec_lo, 0x10000000")
                a("s_mov_b32 exec_hi, 0x10000000")
                for j in range(8):
                    a(f"v_mov_b32 v{OUT+j}, 0x3f803f80")
                a("s_mov_b32 exec_lo, 0xe0000000")
                a("s_mov_b32 exec_hi, 0xe0000000")
                for j in range(8):
                    a(f"v_mov_b32 v{OUT+j}, 0")
                a("s_mov_b64 exec, -1")
            a(f"buffer_store_dwordx4 {vr(OUT)}, v12, s[16:19], s45 offen")
            a(f"buffer_store_dwordx4 {vr(OUT+4)}, v12, s[16:19], s45 offen offset:1024")
            a.nop(2)
        st()
        if STAMP:
            a("s_waitcnt vmcnt(0)")
        st.dump(30)
        a("s_endpgm")

    body(0, "TTT")
    a.label("L_k1_var1")
    body(1, "TTN")
    a.label("L_k1_var2")
    body(2, "NNN")
    ktail(a, name)
    return name, kdesc(name, 256, 0), dict(grid=256, block=256, lds=K1_LDS)


K2_LDS_FLAG = 0
K2_LDS_MAX = 256
K2_LDS_RED = 4096
K2_LDS_WT = K2_LDS_RED + 65536
K2_LDS = K2_LDS_WT + 7 * 2048


def gen_k2(a):
    name = "attn_kernel"
    khead(a, name, 256)
    st = Stamps(a)
    st()
    a("""s_load_dwordx2 s[4:5], s[0:1], 64
    s_load_dwordx2 s[6:7], s[0:1], 16
    s_load_dwordx4 s[12:15], s[0:1], 32
    v_lshrrev_b32 v1, 6, v0
    v_and_b32 v0, 63, v0""")
    a("v_readfirstlane_b32 s30, v1")
    a("v_lshlrev_b32 v1, 4, v0")
    a("""s_and_b32 s26, s2, 7
    s_lshr_b32 s27, s2, 3
    s_lshl_b32 s28, s26, 1
    s_lshr_b32 s29, s27, 4
    s_add_u32 s28, s28, s29
    s_and_b32 s29, s27, 15""")
    a("""s_and_b32 s31, s30, 1
    s_lshr_b32 s32, s30, 1""")
    a(f"""s_lshl_b32 s33, s29, 2
    s_lshl_b32 s34, s31, 1
    s_add_u32 s33, s33, s34
    s_lshl_b32 s34, s28, 6
    s_add_u32 s35, s34, s33
    s_lshl_b32 s35, s35, 11""")
    a(f"""s_lshl_b32 s36, s34, 11
    s_add_u32 s36, s36, {WS_K}""")
    a(f"""s_lshl_b32 s37, s32, 15
    s_add_u32 s37, s37, s36""")
    a("s_mov_b32 s50, 0")
    a(f"""s_cmp_lt_u32 s2, 32
    s_cbranch_scc1 L_k2_wt_wo
    s_cmp_lt_u32 s2, 144
    s_cbranch_scc1 L_k2_wt_w1
    s_sub_u32 s42, s2, 144
    s_lshr_b32 s43, s42, 1
    s_and_b32 s42, s42, 1
    s_mul_i32 s42, s42, 7
    s_add_u32 s42, s42, s30
    s_mul_i32 s53, s42, 56
    s_add_u32 s53, s53, s43
    s_add_u32 s53, s53, 1008
    s_mov_b32 s52, 896
    s_mul_i32 s51, s43, {32*896}
    s_mov_b32 s54, 0
    s_mov_b32 s55, {F*D*2}
    s_waitcnt lgkmcnt(0)
    s_mov_b32 s16, s14
    s_mov_b32 s17, s15
    s_branch L_k2_wt_done""")
    a.label("L_k2_wt_w1")
    a(f"""s_sub_u32 s42, s2, 32
    s_lshr_b32 s43, s42, 3
    s_and_b32 s42, s42, 7
    s_mul_i32 s42, s42, 7
    s_add_u32 s42, s42, s30
    s_mul_i32 s53, s42, 14
    s_add_u32 s53, s53, s43
    s_add_u32 s53, s53, 224
    s_mov_b32 s52, 3584
    s_mul_i32 s51, s43, {32*3584}
    s_mov_b32 s54, 0
    s_mov_b32 s55, {F*D*2}
    s_waitcnt lgkmcnt(0)
    s_mov_b32 s16, s12
    s_mov_b32 s17, s13
    s_branch L_k2_wt_done""")
    a.label("L_k2_wt_wo")
    a(f"""s_lshr_b32 s43, s2, 1
    s_and_b32 s42, s2, 1
    s_mul_i32 s42, s42, 7
    s_add_u32 s42, s42, s30
    s_lshl_b32 s53, s42, 4
    s_add_u32 s53, s53, s43
    s_mov_b32 s52, 896
    s_mul_i32 s51, s43, {28*896}
    s_mov_b32 s54, -1
    s_mov_b32 s55, {D*D*2}
    s_waitcnt lgkmcnt(0)
    s_mov_b32 s16, s6
    s_mov_b32 s17, s7""")
    a.label("L_k2_wt_done")
    a(f"""s_lshl_b32 s42, s42, 6
    s_add_u32 s51, s51, s42
    s_lshl_b32 s53, s53, 11
    s_add_u32 s53, s53, {WS_WT}
    s_mov_b32 s18, s55
    s_mov_b32 s19, 0x00020000
    s_lshl_b32 s56, s52, 4
    s_add_u32 s56, s56, s51
    s_lshl_b32 s57, s30, 11
    s_add_u32 s57, s57, {K2_LDS_WT}
    v_lshrrev_b32 v5, 2, v0
    v_mul_u32_u24 v5, s52, v5
    v_and_b32 v6, 3, v0
    v_lshl_add_u32 v5, v6, 4, v5""")
    srd(a, 8, 4, WS_SIZE)
    QF, O, SB, P, KV, T = 8, 24, 56, 88, 104, 168
    VOFF = WS_V - WS_K

    def load_tile(slot, soff):
        r = KV + 16 * slot
        a(f"buffer_load_dwordx4 {vr(r)}, v1, s[8:11], {soff} offen")
        a(f"buffer_load_dwordx4 {vr(r+4)}, v1, s[8:11], {soff} offen offset:1024")
        a(f"buffer_load_dwordx4 {vr(r+8)}, v2, s[8:11], {soff} offen")
        a(f"buffer_load_dwordx4 {vr(r+12)}, v2, s[8:11], {soff} offen offset:1024")

    def qk(kreg, q, sreg):
        a(f"v_mfma_f32_32x32x16_bf16 {vr(sreg,16)}, {vr(kreg)}, {vr(QF+8*q)}, 0")
        a(f"v_mfma_f32_32x32x16_bf16 {vr(sreg,16)}, {vr(kreg+4)}, {vr(QF+8*q+4)}, {vr(sreg,16)}")

    def pv(vreg, q):
        a(f"v_mfma_f32_32x32x16_bf16 {vr(O+16*q,16)}, {vr(vreg)}, {vr(P+8*q)}, {vr(O+16*q,16)}")
        a(f"v_mfma_f32_32x32x16_bf16 {vr(O+16*q,16)}, {vr(vreg+4)}, {vr(P+8*q+4)}, {vr(O+16*q,16)}")

    def expcvt(q):
        s = SB + 16 * q
        for j in range(8):
            a(f"v_exp_f32 v{s+2*j}, v{s+2*j}")
            a(f"v_exp_f32 v{s+2*j+1}, v{s+2*j+1}")
            if j > 0:
                a(f"v_cvt_pk_bf16_f32 v{P+8*q+j-1}, v{s+2*j-2}, v{s+2*j-1}")
        a.nop(1)
        a(f"v_cvt_pk_bf16_f32 v{P+8*q+7}, v{s+14}, v{s+15}")

    def max16(s, dst, init=None):
        if init is None:
            a(f"v_max3_f32 v{dst}, v{s}, v{s+1}, v{s+2}")
            rest = list(range(3, 16))
        else:
            rest = list(range(0, 16))
        while rest:
            if len(rest) >= 2:
                a(f"v_max3_f32 v{dst}, v{dst}, v{s+rest[0]}, v{s+rest[1]}")
                rest = rest[2:]
            else:
                a(f"v_max_f32 v{dst}, v{dst}, v{s+rest[0]}")
                rest = rest[1:]

    def half_max(v, t):
        a(f"v_mov_b32 v{t}, v{v}")
        a.nop(2)
        a(f"v_permlane32_swap_b32 v{v}, v{t}")
        a.nop(1)
        a(f"v_max_f32 v{v}, v{v}, v{t}")

    def set_pad(q, mreg):
        a(f"v_cvt_pk_bf16_f32 v{T+8}, -v{mreg}, 0")
        a("s_mov_b32 exec_lo, 0")
        a(f"v_mov_b32 v{QF+8*q+6}, v{T+8}")
        a("s_mov_b32 exec_lo, -1")

    a(f"v_add_u32 v2, {VOFF}, v1")
    for q in range(2):
        a(f"buffer_load_dwordx4 {vr(QF+8*q)}, v1, s[8:11], s35 offen offset:{2048*q}")
        a(f"buffer_load_dwordx4 {vr(QF+8*q+4)}, v1, s[8:11], s35 offen offset:{2048*q+1024}")
    a(f"buffer_load_dwordx4 {vr(T+16)}, v1, s[8:11], s36 offen")
    a(f"buffer_load_dwordx4 {vr(T+20)}, v1, s[8:11], s36 offen offset:1024")
    a.label("L_k2_main")
    a("s_mov_b32 s38, s37")
    for t in range(4):
        a(f"s_add_u32 s39, s38, {2048*t}")
        load_tile(t, "s39")
    a("s_add_u32 s38, s38, 8192")
    a("s_cmp_lg_u32 s50, 0")
    a("s_cbranch_scc1 L_k2_havemax")
    a("""s_cmp_eq_u32 s30, 7
    s_cbranch_scc1 L_k2_nowt
    s_mov_b32 m0, s57
    s_nop 0
    buffer_load_dwordx4 v5, s[16:19], s51 offen lds
    s_add_u32 m0, s57, 1024
    s_nop 0
    buffer_load_dwordx4 v5, s[16:19], s56 offen lds
    s_waitcnt vmcnt(18)
    s_branch L_k2_wtj""")
    a.label("L_k2_nowt")
    a("s_waitcnt vmcnt(16)")
    a.label("L_k2_wtj")
    st()
    qk(T + 16, 0, SB)
    qk(T + 16, 1, SB + 16)
    a.nop(12)
    max16(SB, T)
    max16(SB + 16, T + 1)
    half_max(T, T + 2)
    half_max(T + 1, T + 2)
    set_pad(0, T)
    set_pad(1, T + 1)
    a.label("L_k2_havemax")
    for r in range(32):
        a(f"v_mov_b32 v{O+r}, 0")
    a("s_waitcnt vmcnt(14)")
    st()
    qk(KV, 0, SB)
    qk(KV, 1, SB + 16)
    a("s_mov_b32 s40, 0")
    a.nop(8)
    a.label("L_k2_loop")
    a("s_cmp_eq_u32 s40, 3")
    a("s_cselect_b32 s41, 0x7f000000, s38")
    for tt in range(4):
        nx = (tt + 1) % 4
        expcvt(0)
        a("s_waitcnt vmcnt(10)")
        qk(KV + 16 * nx, 0, SB)
        pv(KV + 16 * tt + 8, 0)
        expcvt(1)
        qk(KV + 16 * nx, 1, SB + 16)
        pv(KV + 16 * tt + 8, 1)
        a(f"s_add_u32 s39, s41, {2048*tt}")
        load_tile(tt, "s39")
    a("""s_add_u32 s38, s38, 8192
    s_add_u32 s40, s40, 1
    s_cmp_lt_u32 s40, 4
    s_cbranch_scc1 L_k2_loop""")
    st()
    a(f"""s_cmp_eq_u32 s30, 7
    s_cselect_b32 s42, 1, s50
    s_cmp_lg_u32 s42, 0
    s_cbranch_scc1 L_k2_nowt2
    v_and_b32 v3, 15, v0
    v_lshrrev_b32 v4, 2, v3
    v_and_b32 v3, 3, v3
    v_lshlrev_b32 v3, 3, v3
    v_lshl_add_u32 v3, v4, 6, v3
    v_lshrrev_b32 v4, 4, v0
    v_and_b32 v6, 1, v4
    v_lshl_add_u32 v3, v6, 5, v3
    v_lshrrev_b32 v4, 5, v0
    v_lshl_add_u32 v3, v4, 8, v3
    v_add_u32 v3, s57, v3
    s_waitcnt vmcnt(0)
    ds_read_b64_tr_b16 {vr(KV,2)}, v3
    ds_read_b64_tr_b16 {vr(KV+2,2)}, v3 offset:512
    ds_read_b64_tr_b16 {vr(KV+4,2)}, v3 offset:1024
    ds_read_b64_tr_b16 {vr(KV+6,2)}, v3 offset:1536
    s_mov_b32 exec_lo, 0
    s_mov_b32 exec_hi, s54
    s_waitcnt lgkmcnt(0)
    v_mov_b32 v{KV+6}, 0
    v_mov_b32 v{KV+7}, 0
    s_mov_b64 exec, -1
    buffer_store_dwordx4 {vr(KV)}, v1, s[8:11], s53 offen
    buffer_store_dwordx4 {vr(KV+4)}, v1, s[8:11], s53 offen offset:1024""")
    a.label("L_k2_nowt2")
    a.nop(12)
    a(f"v_mul_f32 v{T}, 0, v{O}")
    for r in range(1, 32):
        a(f"v_fma_f32 v{T}, v{O+r}, 0, v{T}")
    a(f"v_max_f32 v{T+1}, v{O+12}, v{O+28}")
    a(f"s_mov_b32 s42, {hex(f32bits(2.0**30))}")
    a(f"v_cmp_neq_f32 s[44:45], 0, v{T}")
    a(f"v_cmp_nlt_f32 s[46:47], v{T+1}, s42")
    a(f"v_cmp_u_f32 s[48:49], v{O+12}, v{O+28}")
    a.nop(2)
    a("""s_or_b32 s47, s47, s49
    s_or_b32 s44, s44, s45
    s_or_b32 s44, s44, s47
    s_cmp_lg_u32 s44, 0
    s_cselect_b32 s43, 1, 0""")
    a(f"""s_lshl_b32 s44, s30, 13
    v_add_u32 v3, s44, v1
    v_mov_b32 v{T}, s43
    s_lshl_b32 s45, s30, 2
    v_mov_b32 v{T+1}, s45""")
    for j in range(8):
        a(f"ds_write_b128 v3, {vr(O+4*j)} offset:{K2_LDS_RED+1024*j}")
    a(f"ds_write_b32 v{T+1}, v{T} offset:{K2_LDS_FLAG}")
    a("s_waitcnt vmcnt(0) lgkmcnt(0)")
    a("s_barrier")
    a(f"v_mov_b32 v{T+1}, 0")
    a(f"ds_read_b128 {vr(T+4)}, v{T+1} offset:{K2_LDS_FLAG}")
    a(f"ds_read_b128 {vr(T+8)}, v{T+1} offset:{K2_LDS_FLAG+16}")
    a(f"""s_lshl_b32 s44, s31, 13
    s_lshl_b32 s45, s32, 11
    s_add_u32 s44, s44, s45
    v_add_u32 v3, s44, v1""")
    a(f"""s_lshr_b32 s45, s32, 1
    s_lshl_b32 s45, s45, 12
    s_lshl_b32 s46, s31, 13
    s_add_u32 s45, s45, s46
    s_add_u32 s45, s45, {3*1024+512}
    v_and_b32 v4, 31, v0
    v_lshlrev_b32 v4, 4, v4
    v_add_u32 v4, s45, v4""")
    for k in range(4):
        a(f"ds_read_b128 {vr(SB+8*k)}, v3 offset:{K2_LDS_RED+16384*k}")
        a(f"ds_read_b128 {vr(SB+8*k+4)}, v3 offset:{K2_LDS_RED+16384*k+1024}")
        a(f"ds_read_b32 v{P+k}, v4 offset:{K2_LDS_RED+16384*k}")
    a("s_waitcnt lgkmcnt(12)")
    a(f"v_or3_b32 v{T+4}, v{T+4}, v{T+5}, v{T+6}")
    a(f"v_or3_b32 v{T+8}, v{T+8}, v{T+9}, v{T+10}")
    a(f"v_or3_b32 v{T+4}, v{T+4}, v{T+7}, v{T+11}")
    a(f"v_or_b32 v{T+4}, v{T+4}, v{T+8}")
    a.nop(1)
    a(f"v_readfirstlane_b32 s43, v{T+4}")
    a("s_waitcnt lgkmcnt(0)")
    a("""s_andn2_b32 s43, s43, s50
    s_cmp_lg_u32 s43, 0
    s_cbranch_scc1 L_k2_fallback""")
    for r in range(8):
        a(f"v_add_f32 v{SB+r}, v{SB+r}, v{SB+8+r}")
        a(f"v_add_f32 v{SB+16+r}, v{SB+16+r}, v{SB+24+r}")
    a(f"v_add_f32 v{P}, v{P}, v{P+1}")
    a(f"v_add_f32 v{P+2}, v{P+2}, v{P+3}")
    a(f"v_add_f32 v{P}, v{P}, v{P+2}")
    a(f"v_rcp_f32 v{P}, v{P}")
    for r in range(8):
        a(f"v_add_f32 v{SB+r}, v{SB+r}, v{SB+16+r}")
    for r in range(8):
        a(f"v_mul_f32 v{SB+r}, v{SB+r}, v{P}")
    for j in range(4):
        a(f"v_cvt_pk_bf16_f32 v{T+12+j}, v{SB+2*j}, v{SB+2*j+1}")
    a("""s_and_b32 s44, s32, 1
    s_cmp_eq_u32 s44, 1
    s_cselect_b32 s45, -1, 0
    s_mov_b32 exec_lo, 0
    s_mov_b32 exec_hi, s45""")
    a(f"v_mov_b32 v{T+14}, 0")
    a(f"v_mov_b32 v{T+15}, 0")
    a("s_mov_b64 exec, -1")
    a(f"""s_lshr_b32 s45, s32, 1
    s_add_u32 s45, s45, s33
    s_lshl_b32 s45, s45, 4
    s_add_u32 s45, s45, s28
    s_lshl_b32 s45, s45, 1
    s_add_u32 s45, s45, s44
    s_lshl_b32 s45, s45, 10
    s_add_u32 s45, s45, {WS_O}""")
    a(f"buffer_store_dwordx4 {vr(T+12)}, v1, s[8:11], s45 offen")
    if STAMP:
        a("s_waitcnt vmcnt(0)")
    st.dump(30, tmpv=3)
    a("s_endpgm")
    a.label("L_k2_fallback")
    a("s_mov_b32 exec_lo, 0")
    a(f"v_mov_b32 v{QF+6}, 0")
    a(f"v_mov_b32 v{QF+14}, 0")
    a("s_mov_b32 exec_lo, -1")
    a(f"v_mov_b32 v{T}, 0xff800000")
    a(f"v_mov_b32 v{T+1}, 0xff800000")
    a("s_mov_b32 s40, 0")
    a("s_mov_b32 s38, s37")
    a.label("L_k2_fbloop")
    a(f"buffer_load_dwordx4 {vr(T+16)}, v1, s[8:11], s38 offen")
    a(f"buffer_load_dwordx4 {vr(T+20)}, v1, s[8:11], s38 offen offset:1024")
    a("s_waitcnt vmcnt(0)")
    qk(T + 16, 0, SB)
    qk(T + 16, 1, SB + 16)
    a.nop(12)
    max16(SB, T, init=True)
    max16(SB + 16, T + 1, init=True)
    a("""s_add_u32 s38, s38, 2048
    s_add_u32 s40, s40, 1
    s_cmp_lt_u32 s40, 16
    s_cbranch_scc1 L_k2_fbloop""")
    half_max(T, T + 2)
    half_max(T + 1, T + 2)
    a(f"""v_and_b32 v4, 31, v0
    v_lshlrev_b32 v4, 2, v4
    s_lshl_b32 s44, s30, 8
    v_add_u32 v3, s44, v4
    ds_write_b32 v3, v{T} offset:{K2_LDS_MAX}
    ds_write_b32 v3, v{T+1} offset:{K2_LDS_MAX+128}
    s_waitcnt lgkmcnt(0)
    s_barrier
    s_lshl_b32 s44, s31, 8
    v_add_u32 v3, s44, v4""")
    for k in range(4):
        a(f"ds_read_b32 v{T+4+k}, v3 offset:{K2_LDS_MAX+512*k}")
        a(f"ds_read_b32 v{T+8+k}, v3 offset:{K2_LDS_MAX+512*k+128}")
    a("s_waitcnt lgkmcnt(0)")
    a(f"v_max3_f32 v{T}, v{T+4}, v{T+5}, v{T+6}")
    a(f"v_max3_f32 v{T+1}, v{T+8}, v{T+9}, v{T+10}")
    a(f"v_max_f32 v{T}, v{T}, v{T+7}")
    a(f"v_max_f32 v{T+1}, v{T+1}, v{T+11}")
    set_pad(0, T)
    set_pad(1, T + 1)
    a("s_mov_b32 s50, 1")
    a("s_barrier")
    a("s_branch L_k2_main")
    ktail(a, name)
    return name, kdesc(name, 192, 0), dict(grid=256, block=512, lds=K2_LDS)


KS_LDS = 4 * 3 * 4096


def gen_ksplit(a, which):
    k3 = which == "k3"
    name = "wo_kernel" if k3 else "ffn2_kernel"
    nwg = 224 + 14 if k3 else 224
    KT = 16 if k3 else 56
    NST = KT * 2 // 4
    R = 8 if k3 else 10
    WBASE = WS_WO if k3 else WS_W2
    XBASE = WS_O if k3 else WS_F
    khead(a, name, nwg)
    st = Stamps(a)
    st()
    a("s_load_dwordx2 s[4:5], s[0:1], 64")
    a(f"s_load_dwordx2 s[6:7], s[0:1], {0 if k3 else 48}")
    a("""v_lshrrev_b32 v1, 6, v0
    v_and_b32 v0, 63, v0""")
    a("v_readfirstlane_b32 s30, v1")
    a("v_lshlrev_b32 v1, 4, v0")
    if k3:
        a("s_cmp_ge_u32 s2, 224")
        a("s_cbranch_scc1 L_k3_colsum")
    a("""s_and_b32 s26, s2, 7
    s_lshr_b32 s27, s2, 3
    s_lshl_b32 s28, s26, 2
    s_and_b32 s29, s27, 3
    s_add_u32 s28, s28, s29
    s_lshr_b32 s29, s27, 2""")
    a(f"""s_lshr_b32 s31, s30, 1
    s_and_b32 s32, s30, 1
    s_lshl_b32 s33, s29, 1
    s_add_u32 s34, s33, s31
    s_xor_b32 s35, s34, 1
    s_lshl_b32 s33, s28, 1
    s_add_u32 s36, s33, s32
    s_xor_b32 s37, s36, 1
    s_mul_i32 s38, s30, {NST*1024}""")
    for d, t, base in ((40, 34, WBASE), (41, 35, WBASE), (42, 36, XBASE), (43, 37, XBASE)):
        a(f"""s_mul_i32 s{d}, s{t}, {KT*2048}
        s_add_u32 s{d}, s{d}, s38
        s_add_u32 s{d}, s{d}, {base}""")
    RES = 8
    FR = 16
    ACC = FR + R * 16
    T = ACC + 64
    nv = T + 16
    a("v_and_b32 v2, 31, v0")
    a("v_lshrrev_b32 v3, 5, v0")
    if k3:
        a(f"""s_lshl_b32 s44, s36, 5
        v_add_u32 v4, s44, v2
        v_mul_u32_u24 v4, 896, v4
        v_lshl_add_u32 v4, v3, 3, v4
        s_lshl_b32 s45, s34, 6""")
    else:
        a(f"""s_mul_i32 s45, s36, 14
        s_add_u32 s45, s45, s34
        s_lshl_b32 s45, s45, 11
        s_add_u32 s45, s45, {WS_H}""")
    a("s_waitcnt lgkmcnt(0)")
    srd(a, 8, 4, WS_SIZE)
    srd(a, 12, 6, S * D * 2)
    if k3:
        for q in range(4):
            a(f"buffer_load_dwordx2 {vr(RES+2*q,2)}, v4, s[12:15], s45 offen offset:{16*q}")
        NRES = 4
    else:
        a(f"buffer_load_dwordx4 {vr(RES)}, v1, s[8:11], s45 offen")
        a(f"buffer_load_dwordx4 {vr(RES+4)}, v1, s[8:11], s45 offen offset:1024")
        NRES = 2

    def load(step):
        slot = step % R
        r = FR + 16 * slot
        if step % 4 == 0 and step > 0:
            for d in (40, 41, 42, 43):
                a(f"s_add_u32 s{d}, s{d}, 4096")
        off = (step % 4) * 1024
        for i, d in enumerate((40, 42, 41, 43)):
            a(f"buffer_load_dwordx4 {vr(r+4*i)}, v1, s[8:11], s{d} offen offset:{off}")

    for stp in range(min(R, NST)):
        load(stp)
    st()
    a(f"s_waitcnt vmcnt({4*min(R,NST)})")
    for j in range(8):
        a(f"v_lshlrev_b32 v{ACC+2*j}, 16, v{RES+j}")
        a(f"v_and_b32 v{ACC+2*j+1}, 0xffff0000, v{RES+j}")
    issued = min(R, NST)
    for stp in range(NST):
        r = FR + 16 * (stp % R)
        A0, B0, A1, B1 = vr(r), vr(r + 4), vr(r + 8), vr(r + 12)
        rem = issued - stp - 1
        a(f"s_waitcnt vmcnt({4*rem+2})")
        c = lambda j: vr(ACC + 16 * j, 16) if (stp > 0 or j == 0) else "0"
        a(f"v_mfma_f32_32x32x16_bf16 {vr(ACC,16)}, {A0}, {B0}, {c(0)}")
        a(f"s_waitcnt vmcnt({4*rem+1})")
        a(f"v_mfma_f32_32x32x16_bf16 {vr(ACC+32,16)}, {A1}, {B0}, {c(2)}")
        a(f"s_waitcnt vmcnt({4*rem})")
        a(f"v_mfma_f32_32x32x16_bf16 {vr(ACC+16,16)}, {A0}, {B1}, {c(1)}")
        a(f"v_mfma_f32_32x32x16_bf16 {vr(ACC+48,16)}, {A1}, {B1}, {c(3)}")
        if issued < NST:
            load(issued)
            issued += 1
    st()
    for j in (2, 1, 3):
        a(f"""s_xor_b32 s46, s30, {j}
        s_mul_i32 s46, s46, 12288
        s_add_u32 s46, s46, {(j-1)*4096}
        v_add_u32 v{4+j}, s46, v1""")
    a("s_mul_i32 s46, s30, 12288")
    a("v_add_u32 v4, s46, v1")
    a.nop(4)
    for j in (2, 1, 3):
        if j == 3:
            a.nop(4)
        for q in range(4):
            a(f"ds_write_b128 v{4+j}, {vr(ACC+16*j+4*q)} offset:{1024*q}")
    a("s_waitcnt lgkmcnt(0)")
    a("s_barrier")
    for j in range(3):
        for q in range(4):
            a(f"ds_read_b128 {vr(FR+16*j+4*q)}, v4 offset:{4096*j+1024*q}")
    a("s_waitcnt lgkmcnt(4)")
    for r in range(16):
        a(f"v_add_f32 v{FR+r}, v{FR+r}, v{FR+16+r}")
    a("s_waitcnt lgkmcnt(0)")
    for r in range(16):
        a(f"v_add_f32 v{ACC+r}, v{ACC+r}, v{FR+32+r}")
    for r in range(16):
        a(f"v_add_f32 v{ACC+r}, v{ACC+r}, v{FR+r}")
    OUT = T
    for j in range(8):
        a(f"v_cvt_pk_bf16_f32 v{OUT+j}, v{ACC+2*j}, v{ACC+2*j+1}")
    if k3:
        a(f"""s_mul_i32 s45, s36, 14
        s_add_u32 s45, s45, s34
        s_lshl_b32 s45, s45, 11
        s_add_u32 s45, s45, {WS_H}""")
        a(f"buffer_store_dwordx4 {vr(OUT)}, v1, s[8:11], s45 offen")
        a(f"buffer_store_dwordx4 {vr(OUT+4)}, v1, s[8:11], s45 offen offset:1024")
        S0, Q0, S1, Q1, ON = T + 8, T + 9, T + 10, T + 11, T + 12
        a(f"v_mov_b32 v{ON}, 0x3f803f80")
        for r in (S0, Q0, S1, Q1):
            a(f"v_mov_b32 v{r}, 0")
        for j in range(8):
            a(f"v_dot2c_f32_bf16 v{S0 if j%2==0 else S1}, v{OUT+j}, v{ON}")
            a(f"v_dot2c_f32_bf16 v{Q0 if j%2==0 else Q1}, v{OUT+j}, v{OUT+j}")
        a.nop(3)
        a(f"v_add_f32 v{S0}, v{S0}, v{S1}")
        a(f"v_add_f32 v{Q0}, v{Q0}, v{Q1}")
        half_sum(a, S0, S1)
        half_sum(a, Q0, Q1)
        a(f"""s_lshl_b32 s45, s34, 11
        s_lshl_b32 s46, s36, 5
        s_add_u32 s45, s45, s46
        s_lshl_b32 s45, s45, 3
        s_add_u32 s45, s45, {WS_ST}
        v_lshlrev_b32 v4, 3, v2
        s_mov_b32 exec_hi, 0""")
        a(f"buffer_store_dwordx2 {vr(S0,2)}, v4, s[8:11], s45 offen")
        a("s_mov_b32 exec_hi, -1")
    else:
        a.nop(2)
        for p in range(2):
            a(f"v_permlane32_swap_b32 v{OUT+4*p}, v{OUT+4*p+2}")
            a(f"v_permlane32_swap_b32 v{OUT+4*p+1}, v{OUT+4*p+3}")
        a(f"""s_lshl_b32 s44, s36, 5
        v_add_u32 v4, s44, v2
        v_mul_u32_u24 v4, 896, v4
        v_lshl_add_u32 v4, v3, 4, v4
        s_lshl_b32 s45, s34, 6""")
        a(f"buffer_store_dwordx4 {vr(OUT)}, v4, s[12:15], s45 offen")
        a(f"buffer_store_dwordx4 {vr(OUT+4)}, v4, s[12:15], s45 offen offset:32")
    if STAMP:
        a("s_waitcnt vmcnt(0)")
    st.dump(30, tmpv=4)
    a("s_endpgm")
    if k3:
        a.label("L_k3_colsum")
        a(f"""s_sub_u32 s26, s2, 224
        s_lshl_b32 s26, s26, 2
        s_add_u32 s26, s26, s30
        s_mul_i32 s40, s26, {28*1024}
        s_add_u32 s40, s40, {WS_W1}
        s_waitcnt lgkmcnt(0)""")
        srd(a, 8, 4, WS_SIZE)
        for i in range(28):
            if i % 4 == 0 and i > 0:
                a("s_add_u32 s40, s40, 4096")
            a(f"buffer_load_dwordx4 {vr(16+4*i)}, v1, s[8:11], s40 offen offset:{(i%4)*1024}")
        for j in range(4):
            a(f"v_mov_b32 v{8+j}, 0x3f803f80")
        CA = 128
        for i in range(28):
            a(f"s_waitcnt vmcnt({27-i})")
            a(f"v_mfma_f32_32x32x16_bf16 {vr(CA,16)}, {vr(16+4*i)}, {vr(8)}, {vr(CA,16) if i else '0'}")
        a(f"""s_lshl_b32 s45, s26, 7
        s_add_u32 s45, s45, {WS_CS}
        v_lshrrev_b32 v3, 5, v0
        v_lshlrev_b32 v4, 4, v3
        s_mov_b32 exec_lo, 1
        s_mov_b32 exec_hi, 1""")
        a.nop(12)
        for q in range(4):
            a(f"buffer_store_dwordx4 {vr(CA+4*q)}, v4, s[8:11], s45 offen offset:{32*q}")
        a("s_endpgm")
    ktail(a, name)
    assert nv <= 256
    return name, kdesc(name, nv, 0), dict(grid=nwg, block=256, lds=KS_LDS)


def gen_k3(a):
    return gen_ksplit(a, "k3")


def gen_k5(a):
    return gen_ksplit(a, "k5")


K4_LDS_ST = 0
K4_LDS_H = 1024
K4_LDS = K4_LDS_H + 112 * 1024


def gen_k4(a):
    name = "ffn1_kernel"
    khead(a, name, 224)
    st = Stamps(a)
    st()
    a("s_load_dwordx2 s[4:5], s[0:1], 64")
    a("""v_lshrrev_b32 v1, 6, v0
    v_and_b32 v0, 63, v0""")
    a("v_readfirstlane_b32 s30, v1")
    a("v_lshlrev_b32 v1, 4, v0")
    a("""s_and_b32 s26, s2, 7
    s_lshr_b32 s27, s2, 3
    s_lshl_b32 s28, s26, 1
    s_and_b32 s29, s27, 1
    s_add_u32 s28, s28, s29
    s_lshr_b32 s29, s27, 1""")
    a(f"""s_lshl_b32 s31, s29, 2
    s_add_u32 s31, s31, s30
    s_lshl_b32 s32, s28, 2
    s_add_u32 s33, s32, s30
    s_mul_i32 s40, s31, {28*1024}
    s_add_u32 s40, s40, {WS_W1}
    s_mul_i32 s41, s33, {28*1024}
    s_add_u32 s41, s41, {WS_H}
    s_mul_i32 s42, s30, {28*1024}
    s_add_u32 s42, s42, {K4_LDS_H}""")
    a("""v_and_b32 v2, 31, v0
    v_lshrrev_b32 v3, 5, v0""")
    a(f"""v_mul_u32_u24 v4, {7*2048*8}, v3
    v_lshl_add_u32 v4, v2, 3, v4
    s_lshl_b32 s43, s33, 8
    s_add_u32 s43, s43, {WS_ST}
    s_lshl_b32 s44, s31, 7
    s_add_u32 s44, s44, {WS_CS}
    v_lshlrev_b32 v5, 4, v3""")
    a("s_waitcnt lgkmcnt(0)")
    srd(a, 8, 4, WS_SIZE)
    WF = 16
    HB = 128
    ACC = 160
    CS = 224
    T = 240
    STR = HB
    for i in range(7):
        a(f"buffer_load_dwordx2 {vr(STR+2*i,2)}, v4, s[8:11], s43 offen")
        if i < 6:
            a(f"s_add_u32 s43, s43, {2048*8}")
    for q in range(4):
        a(f"buffer_load_dwordx4 {vr(CS+4*q)}, v5, s[8:11], s44 offen offset:{32*q}")
    for c in range(7):
        a(f"s_add_u32 m0, s42, {c*4096}")
        for i in range(4):
            a(f"buffer_load_dwordx4 {vr(WF+16*c+4*i)}, v1, s[8:11], s40 offen offset:{1024*i}")
            a(f"buffer_load_dwordx4 v1, s[8:11], s41 offen offset:{1024*i} lds")
        if c < 6:
            a("s_add_u32 s40, s40, 4096")
            a("s_add_u32 s41, s41, 4096")
    st()
    a("s_waitcnt vmcnt(60)")
    for i in range(1, 7):
        a(f"v_add_f32 v{STR}, v{STR}, v{STR+2*i}")
        a(f"v_add_f32 v{STR+1}, v{STR+1}, v{STR+2*i+1}")
    half_sum(a, STR, T)
    half_sum(a, STR + 1, T)
    a(f"v_mul_f32 v{STR}, {hex(f32bits(1.0/D))}, v{STR}")
    a(f"v_mul_f32 v{STR+1}, {hex(f32bits(1.0/D))}, v{STR+1}")
    a(f"v_fma_f32 v{STR+1}, -v{STR}, v{STR}, v{STR+1}")
    a(f"v_max_f32 v{STR+1}, 0, v{STR+1}")
    bf16_round(a, STR, T)
    bf16_round(a, STR + 1, T)
    a(f"v_add_f32 v{STR+1}, {hex(f32bits(1e-5))}, v{STR+1}")
    bf16_round(a, STR + 1, T)
    a(f"v_sqrt_f32 v{STR+1}, v{STR+1}")
    a.nop(1)
    bf16_round(a, STR + 1, T)
    a(f"""s_lshl_b32 s45, s30, 8
    v_lshlrev_b32 v6, 3, v2
    v_add_u32 v7, s45, v6
    ds_write_b64 v7, {vr(STR,2)} offset:{K4_LDS_ST}""")
    a("v_add_u32 v8, 57344, v1")

    def hread(step, buf):
        for mi in range(4):
            base = 1 if mi < 2 else 8
            off = K4_LDS_H + (mi & 1) * 28672 + step * 1024
            a(f"ds_read_b128 {vr(HB+16*buf+4*mi)}, v{base} offset:{off}")

    def chunk_wait(c):
        a(f"s_waitcnt vmcnt({(6-c)*8}) lgkmcnt(0)" if c == 0 else f"s_waitcnt vmcnt({(6-c)*8})")
        a("s_barrier")

    chunk_wait(0)
    st()
    hread(0, 0)
    for step in range(28):
        buf = step & 1
        nxt = step + 1
        if nxt < 28:
            if nxt % 4 == 0:
                chunk_wait(nxt // 4)
            hread(nxt, buf ^ 1)
        for mi in range(4):
            a(f"s_waitcnt lgkmcnt({(4 if nxt < 28 else 0) + 3 - mi})")
            acc = vr(ACC + 16 * mi, 16)
            a(f"v_mfma_f32_32x32x16_bf16 {acc}, {vr(WF+4*step)}, {vr(HB+16*buf+4*mi)}, {acc if step else '0'}")
    st()
    MS = WF
    for mi in range(4):
        a(f"ds_read_b64 {vr(MS+2*mi,2)}, v6 offset:{K4_LDS_ST+256*mi}")
    a(f"""s_mul_i32 s45, s32, 56
    s_add_u32 s45, s45, s31
    s_lshl_b32 s45, s45, 11
    s_add_u32 s45, s45, {WS_F}""")
    a("s_waitcnt lgkmcnt(0)")
    for mi in range(4):
        a(f"v_rcp_f32 v{MS+8+mi}, v{MS+2*mi+1}")
    a.nop(1)
    for mi in range(4):
        a(f"v_mul_f32 v{MS+8+mi}, {hex(f32bits(-math.log2(math.e)))}, v{MS+8+mi}")
    E = WF + 16
    for mi in range(4):
        acc = ACC + 16 * mi
        mean, sd, c2 = MS + 2 * mi, MS + 2 * mi + 1, MS + 8 + mi
        OUT = WF + 32 + 8 * mi
        for r in range(16):
            a(f"v_fma_f32 v{acc+r}, -v{mean}, v{CS+r}, v{acc+r}")
            a(f"v_mul_f32 v{E+r}, v{c2}, v{acc+r}")
        for r in range(16):
            a(f"v_exp_f32 v{E+r}, v{E+r}")
        for r in range(16):
            a(f"v_fma_f32 v{E+r}, v{E+r}, v{sd}, v{sd}")
        for r in range(16):
            a(f"v_rcp_f32 v{E+r}, v{E+r}")
        for r in range(16):
            a(f"v_mul_f32 v{acc+r}, v{acc+r}, v{E+r}")
        for j in range(8):
            a(f"v_cvt_pk_bf16_f32 v{OUT+j}, v{acc+2*j}, v{acc+2*j+1}")
        a(f"buffer_store_dwordx4 {vr(OUT)}, v1, s[8:11], s45 offen")
        a(f"buffer_store_dwordx4 {vr(OUT+4)}, v1, s[8:11], s45 offen offset:1024")
        if mi < 3:
            a(f"s_add_u32 s45, s45, {56*2048}")
    if STAMP:
        a("s_waitcnt vmcnt(0)")
    st.dump(30, tmpv=4)
    ktail(a, name)
    return name, kdesc(name, 256, 0), dict(grid=224, block=256, lds=K4_LDS)


def main():
    global STAMP, STAMP_WG
    if "--stamp" in sys.argv:
        i = sys.argv.index("--stamp")
        STAMP = True
        STAMP_WG = int(sys.argv[i+1])
        del sys.argv[i:i+2]
    a = Asm()
    kernels = []
    for g in (gen_k1, gen_k2, gen_k3, gen_k4, gen_k5):
        kernels.append(g(a))
    hdr = []
    for name, _, l in kernels:
        hdr.append(f"; @launch kernel={name} grid=({l['grid']},1,1) block=({l['block']},1,1) lds={l['lds']}")
    hdr.append('.amdgcn_target "amdgcn-amd-amdhsa--gfx950"')
    hdr.append(".text")
    txt = "\n".join(hdr) + "\n" + a.text() + '.section .rodata,"a"\n' + "".join(d for _, d, _ in kernels)
    out = sys.argv[1] if len(sys.argv) > 1 else "k.s"
    open(out, "w").write(txt)


if __name__ == "__main__":
    main()
```

```python
import sys, math, struct

S, D, H, DH, F = 2048, 448, 16, 28, 1792
MB = 1 << 20
WS_Q, WS_K, WS_V, WS_O, WS_H, WS_ST, WS_F = 0, 2 * MB, 4 * MB, 6 * MB, 8 * MB, 10 * MB, 12 * MB
WS_WT = 20 * MB
WS_WO, WS_W1, WS_W2 = WS_WT, WS_WT + 224 * 2048, WS_WT + 1008 * 2048
WS_CS = 24 * MB
WS_SIZE = 25 * MB


def f32bits(x):
    return struct.unpack("<I", struct.pack("<f", x))[0]


class Asm:
    def __init__(self):
        self.L = []

    def __call__(self, s):
        for line in s.strip("\n").split("\n"):
            self.L.append("    " + line.strip())

    def label(self, s):
        self.L.append(s + ":")

    def raw(self, s):
        self.L.append(s)

    def nop(self, n):
        while n > 0:
            k = min(n, 16)
            self(f"s_nop {k-1}")
            n -= k

    def text(self):
        return "\n".join(self.L) + "\n"


STAMP = False
PREFETCH = '--noprefetch' not in sys.argv
STAMP_WG = 0
class Stamps:
    def __init__(self, a):
        self.a = a; self.n = 0
    def __call__(self):
        if not STAMP: return
        self.a(f"s_memtime s[{64+2*self.n}:{65+2*self.n}]")
        self.a("s_waitcnt lgkmcnt(0)")
        self.n += 1
        assert self.n <= 16
    def dump(self, wave_sgpr, tmpv=1):
        if not STAMP: return
        a = self.a
        self()
        lab = f"L_nodump_{len(a.L)}"
        a(f"s_cmp_lg_u32 s2, {STAMP_WG}")
        a(f"s_cbranch_scc1 {lab}")
        a(f"s_cmp_lg_u32 s{wave_sgpr}, 0")
        a(f"s_cbranch_scc1 {lab}")
        a("s_load_dwordx2 s[60:61], s[0:1], 56")
        a("s_waitcnt lgkmcnt(0)")
        a("s_mov_b32 s62, 256")
        a("s_mov_b32 s63, 0x00020000")
        a(f"v_mov_b32 v{tmpv}, 0")
        for i in range(self.n):
            a(f"s_sub_u32 s{64+2*i+1}, s{64+2*i}, s64")
            a(f"v_mov_b32 v{tmpv+1}, s{64+2*i+1}")
            a(f"buffer_store_dword v{tmpv+1}, v{tmpv}, s[60:63], 0 offen offset:{4*i}")
            a("s_nop 1")
        a("s_waitcnt vmcnt(0)")
        a.label(lab)


def vr(b, n=4):
    return f"v[{b}:{b+n-1}]"


def ar(b, n=16):
    return f"a[{b}:{b+n-1}]"


def srd(a, s, ptr_s, size):
    a(f"""s_mov_b32 s{s}, s{ptr_s}
    s_mov_b32 s{s+1}, s{ptr_s+1}
    s_mov_b32 s{s+2}, {size}
    s_mov_b32 s{s+3}, 0x00020000""")


def khead(a, name, nwg):
    a.raw(f".globl {name}")
    a.raw(".p2align 8")
    a.raw(f".type {name},@function")
    a.label(name)
    a(f"s_cmp_ge_u32 s2, {nwg}")
    a(f"s_cbranch_scc1 L_{name}_done")


def ktail(a, name):
    a.label(f"L_{name}_done")
    a("s_endpgm")


def kdesc(name, vgpr, agpr, sgpr=96):
    acc = (vgpr + 3) // 4 * 4
    nfv = acc + agpr if agpr else vgpr
    return f""".p2align 6
.amdhsa_kernel {name}
  .amdhsa_next_free_vgpr {nfv}
  .amdhsa_next_free_sgpr {sgpr}
  .amdhsa_accum_offset {acc}
  .amdhsa_group_segment_fixed_size 0
  .amdhsa_kernarg_size 72
  .amdhsa_user_sgpr_count 2
  .amdhsa_user_sgpr_kernarg_segment_ptr 1
  .amdhsa_system_sgpr_workgroup_id_x 1
.end_amdhsa_kernel
"""


def bf16_round(a, v, tmp):
    a(f"v_cvt_pk_bf16_f32 v{tmp}, v{v}, v{v}")
    a(f"v_lshlrev_b32 v{v}, 16, v{tmp}")


def half_sum(a, v, t):
    a(f"v_mov_b32 v{t}, v{v}")
    a.nop(2)
    a(f"v_permlane32_swap_b32 v{v}, v{t}")
    a.nop(1)
    a(f"v_add_f32 v{v}, v{v}, v{t}")


def ln_stats(a, vsum, vsq, vrstd, vnmr, t0, t1):
    a(f"v_mul_f32 v{vsum}, {hex(f32bits(1.0/D))}, v{vsum}")
    a(f"v_mul_f32 v{vsq}, {hex(f32bits(1.0/D))}, v{vsq}")
    a(f"v_fma_f32 v{vsq}, -v{vsum}, v{vsum}, v{vsq}")
    a(f"v_max_f32 v{vsq}, 0, v{vsq}")
    bf16_round(a, vsum, t0)
    bf16_round(a, vsq, t0)
    a(f"v_add_f32 v{vsq}, {hex(f32bits(1e-5))}, v{vsq}")
    bf16_round(a, vsq, t0)
    a(f"v_sqrt_f32 v{vsq}, v{vsq}")
    a.nop(1)
    bf16_round(a, vsq, t0)
    a(f"v_rcp_f32 v{vrstd}, v{vsq}")
    a.nop(1)
    a(f"v_mul_f32 v{vnmr}, v{vsum}, v{vrstd}")
    a(f"v_sub_f32 v{vnmr}, 0, v{vnmr}")


K1_LDS_CS = 0
K1_LDS_RS = 512
K1_LDS_W = 2048
K1_LDS = K1_LDS_W + 448 * 192


def gen_k1(a):
    name = "qkv_kernel"
    khead(a, name, 256)
    st0 = Stamps(a)
    st0()
    a("""s_load_dwordx4 s[4:7], s[0:1], 0
    s_load_dwordx2 s[24:25], s[0:1], 64
    v_lshrrev_b32 v1, 6, v0
    v_and_b32 v0, 63, v0""")
    a("v_readfirstlane_b32 s30, v1")
    if PREFETCH:
        a("s_getpc_b64 s[20:21]")
        a.label("L_pc0")
        a("""s_sub_u32 s20, s20, L_pc0-qkv_kernel
        s_subb_u32 s21, s21, 0
        s_mov_b32 s22, L_code_end-qkv_kernel
        s_mov_b32 s23, 0x00020000
        s_lshr_b32 s26, s2, 3
        s_lshl_b32 s26, s26, 2
        s_add_u32 s26, s26, s30
        s_lshl_b32 s26, s26, 10
        v_lshlrev_b32 v2, 4, v0
        buffer_load_dwordx4 v[252:255], v2, s[20:23], s26 offen""")
    a("""s_and_b32 s26, s2, 7
    s_lshr_b32 s27, s2, 3
    s_lshr_b32 s28, s26, 1
    s_lshl_b32 s28, s28, 2
    s_and_b32 s29, s27, 3
    s_add_u32 s28, s28, s29
    s_and_b32 s29, s26, 1
    s_lshl_b32 s29, s29, 3
    s_lshr_b32 s27, s27, 2
    s_add_u32 s29, s29, s27""")
    a("s_mul_i32 s31, s29, 3")
    a("s_lshl_b32 s32, s28, 2")
    a("s_add_u32 s32, s32, s30")
    a("""v_and_b32 v2, 31, v0
    v_lshrrev_b32 v3, 5, v0
    s_lshl_b32 s33, s32, 5
    v_add_u32 v4, s33, v2
    v_mul_u32_u24 v4, 896, v4
    v_lshl_add_u32 v4, v3, 4, v4""")
    a("s_lshl_b32 s34, s30, 6")
    a("s_mul_i32 s35, s31, 56")
    for i in range(3):
        a(f"""v_add_u32 v5, s34, v0
        v_add_u32 v5, {i*256}, v5
        v_mul_u32_u24 v6, 43691, v5
        v_lshrrev_b32 v6, 19, v6
        v_mul_u32_u24 v7, 12, v6
        v_sub_u32 v7, v5, v7
        v_lshrrev_b32 v8, 2, v7
        v_and_b32 v7, 3, v7
        v_mul_u32_u24 v6, 2688, v6
        v_mul_u32_u24 v8, 56, v8
        v_lshl_add_u32 v6, v7, 4, v6
        v_add3_u32 v{10+i}, v6, v8, s35""")
    a("""v_and_b32 v5, 15, v0
    v_lshrrev_b32 v6, 2, v5
    v_and_b32 v7, 3, v5
    v_lshrrev_b32 v8, 4, v0
    v_and_b32 v8, 1, v8
    v_lshl_add_u32 v6, v3, 3, v6
    v_mul_u32_u24 v6, 192, v6
    v_lshl_add_u32 v6, v8, 5, v6
    v_lshl_add_u32 v13, v7, 3, v6
    v_add_u32 v13, 2048, v13
    v_add_u32 v14, 43008, v13""")
    a("""s_cmp_eq_u32 s30, 3
    s_cselect_b32 s36, 0, s30
    s_lshl_b32 s37, s36, 6
    v_add_u32 v15, s37, v13
    v_add_u32 v9, s37, v14""")
    a("s_waitcnt lgkmcnt(0)")
    srd(a, 8, 4, S * D * 2)
    srd(a, 12, 6, D * 3 * D * 2)
    srd(a, 16, 24, WS_SIZE)
    XB = 16
    AF = 128
    ACC = 160
    SUM0, SUM1, SQ0, SQ1, CS0, CS1 = 208, 209, 210, 211, 212, 213
    ONES = 214
    T0 = 216
    a("s_lshl_b32 s38, s30, 10")
    for c in range(7):
        for s in range(4 * c, 4 * c + 4):
            a(f"buffer_load_dwordx4 {vr(XB+4*s)}, v4, s[8:11], 0 offen offset:{32*s}")
        a(f"s_mov_b32 s39, {c*64*2688}")
        for i in range(3):
            a(f"s_add_u32 m0, s38, {K1_LDS_W+(c*3+i)*4096}")
            a("s_nop 0")
            a(f"buffer_load_dwordx4 v{10+i}, s[12:15], s39 offen lds")
    for r in (SUM0, SUM1, SQ0, SQ1, CS0, CS1):
        a(f"v_mov_b32 v{r}, 0")
    a(f"v_mov_b32 v{ONES}, 0x3f803f80")
    a("""s_cmp_ge_u32 s29, 11
    s_cbranch_scc1 L_k1_var2
    s_cmp_eq_u32 s29, 10
    s_cbranch_scc1 L_k1_var1""")

    def trread(step, buf):
        base, baseC = (13, 15) if step < 14 else (14, 9)
        off = (step % 14) * 3072
        for hd in range(3):
            r = AF + buf * 16 + hd * 4
            a(f"ds_read_b64_tr_b16 {vr(r,2)}, v{base} offset:{off+hd*64}")
            a(f"ds_read_b64_tr_b16 {vr(r+2,2)}, v{base} offset:{off+hd*64+768}")
        r = AF + buf * 16 + 12
        a(f"ds_read_b64_tr_b16 {vr(r,2)}, v{baseC} offset:{off}")
        a(f"ds_read_b64_tr_b16 {vr(r+2,2)}, v{baseC} offset:{off+768}")

    st0()
    if STAMP and "--drain" in sys.argv:
        a("s_waitcnt vmcnt(0)")
        a("s_barrier")
        st0()
    n0 = st0.n
    def body(var, types):
        st = Stamps(a); st.n = n0
        def chunk_wait(c):
            a(f"s_waitcnt vmcnt({(6-c)*7})")
            a("s_barrier")
            st()

        def stats(c):
            for s in range(4 * c, 4 * c + 4):
                for j in range(4):
                    x = XB + 4 * s + j
                    a(f"v_dot2c_f32_bf16 v{SUM0 + (j&1)}, v{x}, v{ONES}")
                    a(f"v_dot2c_f32_bf16 v{SQ0 + (j&1)}, v{x}, v{x}")
        chunk_wait(0)
        trread(0, 0)
        stats(0)
        for step in range(28):
            buf = step & 1
            nxt = step + 1
            if nxt < 28:
                if nxt % 4 == 0:
                    chunk_wait(nxt // 4)
                trread(nxt, buf ^ 1)
                a("s_waitcnt lgkmcnt(8)")
            else:
                a("s_waitcnt lgkmcnt(0)")
            csr = AF + buf * 16 + 12
            valu = []
            for j in range(4):
                valu.append(f"v_lshlrev_b32 v{T0+2*j}, 16, v{csr+j}")
                valu.append(f"v_and_b32 v{T0+2*j+1}, 0xffff0000, v{csr+j}")
            for j in range(4):
                valu.append(f"v_add_f32 v{CS0}, v{CS0}, v{T0+2*j}")
                valu.append(f"v_add_f32 v{CS1}, v{CS1}, v{T0+2*j+1}")
            for hd in range(3):
                wf = vr(AF + buf * 16 + hd * 4)
                xf = vr(XB + 4 * step)
                acc = vr(ACC + 16 * hd, 16)
                c = "0" if step == 0 else acc
                if types[hd] == "T":
                    a(f"v_mfma_f32_32x32x16_bf16 {acc}, {wf}, {xf}, {c}")
                else:
                    a(f"v_mfma_f32_32x32x16_bf16 {acc}, {xf}, {wf}, {c}")
                k = [5, 5, 6][hd]
                for _ in range(k):
                    a(valu.pop(0))
            assert not valu
            if nxt < 28 and nxt % 4 == 0:
                stats(nxt // 4)
        st()
        a.nop(3)
        a(f"v_add_f32 v{SUM0}, v{SUM0}, v{SUM1}")
        a(f"v_add_f32 v{SQ0}, v{SQ0}, v{SQ1}")
        a(f"v_add_f32 v{CS0}, v{CS0}, v{CS1}")
        half_sum(a, SUM0, T0)
        half_sum(a, SQ0, T0)
        half_sum(a, CS0, T0)
        RSTD, NMR = SUM1, SQ1
        ln_stats(a, SUM0, SQ0, RSTD, NMR, T0, T0 + 1)
        a(f"""s_lshl_b32 s40, s36, 7
        v_lshlrev_b32 v5, 2, v2
        v_add_u32 v6, s40, v5
        s_lshl_b32 s41, s30, 8
        v_add_u32 v7, s41, v5
        ds_write_b32 v6, v{CS0} offset:{K1_LDS_CS}
        ds_write_b32 v7, v{RSTD} offset:{K1_LDS_RS}
        ds_write_b32 v7, v{NMR} offset:{K1_LDS_RS+128}
        s_waitcnt lgkmcnt(0)
        s_barrier""")
        a(f"""v_lshlrev_b32 v6, 4, v3
        v_add_u32 v8, s41, v6
        v_lshlrev_b32 v12, 4, v0""")
        CSR = XB
        RA, RB = XB + 16, XB + 32
        OUT = XB + 48
        if "N" in types:
            for q in range(4):
                a(f"ds_read_b128 {vr(RA+4*q)}, v8 offset:{K1_LDS_RS+32*q}")
                a(f"ds_read_b128 {vr(RB+4*q)}, v8 offset:{K1_LDS_RS+128+32*q}")
        for hd in range(3):
            acc = ACC + 16 * hd
            a(f"""s_add_u32 s42, s31, {hd}
            s_lshr_b32 s43, s42, 4
            s_and_b32 s44, s42, 15
            s_lshl_b32 s45, s43, 21
            s_lshl_b32 s44, s44, 6
            s_add_u32 s44, s44, s32
            s_lshl_b32 s44, s44, 11
            s_add_u32 s45, s45, s44""")
            if types[hd] == "T":
                for q in range(4):
                    a(f"ds_read_b128 {vr(CSR+4*q)}, v6 offset:{K1_LDS_CS+hd*128+32*q}")
                sc = (DH ** -0.5) * math.log2(math.e)
                a(f"""s_cmp_eq_u32 s43, 0
                s_cselect_b32 s46, {hex(f32bits(sc))}, 1.0
                s_cselect_b32 s47, 0, 0x3f80
                v_mul_f32 v{T0}, s46, v{RSTD}
                v_mul_f32 v{T0+1}, s46, v{NMR}
                s_waitcnt lgkmcnt(0)""")
                for r in range(16):
                    a(f"v_mul_f32 v{CSR+r}, v{T0+1}, v{CSR+r}")
                    a(f"v_fma_f32 v{CSR+r}, v{acc+r}, v{T0}, v{CSR+r}")
                for j in range(8):
                    a(f"v_cvt_pk_bf16_f32 v{OUT+j}, v{CSR+2*j}, v{CSR+2*j+1}")
                a(f"""s_mov_b32 exec_lo, 0
                v_mov_b32 v{OUT+6}, s47
                v_mov_b32 v{OUT+7}, 0
                s_mov_b32 exec_lo, -1""")
            else:
                a(f"ds_read_b32 v{T0}, v5 offset:{K1_LDS_CS+hd*128}")
                a("s_waitcnt lgkmcnt(0)")
                for r in range(16):
                    a(f"v_mul_f32 v{CSR+r}, v{T0}, v{RB+r}")
                    a(f"v_fma_f32 v{CSR+r}, v{acc+r}, v{RA+r}, v{CSR+r}")
                for j in range(8):
                    a(f"v_cvt_pk_bf16_f32 v{OUT+j}, v{CSR+2*j}, v{CSR+2*j+1}")
                a("s_mov_b32 exec_lo, 0x10000000")
                a("s_mov_b32 exec_hi, 0x10000000")
                for j in range(8):
                    a(f"v_mov_b32 v{OUT+j}, 0x3f803f80")
                a("s_mov_b32 exec_lo, 0xe0000000")
                a("s_mov_b32 exec_hi, 0xe0000000")
                for j in range(8):
                    a(f"v_mov_b32 v{OUT+j}, 0")
                a("s_mov_b64 exec, -1")
            a(f"buffer_store_dwordx4 {vr(OUT)}, v12, s[16:19], s45 offen")
            a(f"buffer_store_dwordx4 {vr(OUT+4)}, v12, s[16:19], s45 offen offset:1024")
            a.nop(2)
        st()
        if STAMP:
            a("s_waitcnt vmcnt(0)")
        st.dump(30)
        a("s_endpgm")

    body(0, "TTT")
    a.label("L_k1_var1")
    body(1, "TTN")
    a.label("L_k1_var2")
    body(2, "NNN")
    ktail(a, name)
    return name, kdesc(name, 256, 0), dict(grid=256, block=256, lds=K1_LDS)


K2_LDS_FLAG = 0
K2_LDS_MAX = 256
K2_LDS_RED = 4096
K2_LDS_WT = K2_LDS_RED + 65536
K2_LDS = K2_LDS_WT + 7 * 2048


def gen_k2(a):
    name = "attn_kernel"
    khead(a, name, 256)
    st = Stamps(a)
    st()
    a("""s_load_dwordx2 s[4:5], s[0:1], 64
    s_load_dwordx2 s[6:7], s[0:1], 16
    s_load_dwordx4 s[12:15], s[0:1], 32
    v_lshrrev_b32 v1, 6, v0
    v_and_b32 v0, 63, v0""")
    a("v_readfirstlane_b32 s30, v1")
    a("v_lshlrev_b32 v1, 4, v0")
    a("""s_and_b32 s26, s2, 7
    s_lshr_b32 s27, s2, 3
    s_lshl_b32 s28, s26, 1
    s_lshr_b32 s29, s27, 4
    s_add_u32 s28, s28, s29
    s_and_b32 s29, s27, 15""")
    a("""s_and_b32 s31, s30, 1
    s_lshr_b32 s32, s30, 1""")
    a(f"""s_lshl_b32 s33, s29, 2
    s_lshl_b32 s34, s31, 1
    s_add_u32 s33, s33, s34
    s_lshl_b32 s34, s28, 6
    s_add_u32 s35, s34, s33
    s_lshl_b32 s35, s35, 11""")
    a(f"""s_lshl_b32 s36, s34, 11
    s_add_u32 s36, s36, {WS_K}""")
    a(f"""s_lshl_b32 s37, s32, 15
    s_add_u32 s37, s37, s36""")
    a("s_mov_b32 s50, 0")
    a(f"""s_cmp_lt_u32 s2, 32
    s_cbranch_scc1 L_k2_wt_wo
    s_cmp_lt_u32 s2, 144
    s_cbranch_scc1 L_k2_wt_w1
    s_sub_u32 s42, s2, 144
    s_lshr_b32 s43, s42, 1
    s_and_b32 s42, s42, 1
    s_mul_i32 s42, s42, 7
    s_add_u32 s42, s42, s30
    s_mul_i32 s53, s42, 56
    s_add_u32 s53, s53, s43
    s_add_u32 s53, s53, 1008
    s_mov_b32 s52, 896
    s_mul_i32 s51, s43, {32*896}
    s_mov_b32 s54, 0
    s_mov_b32 s55, {F*D*2}
    s_waitcnt lgkmcnt(0)
    s_mov_b32 s16, s14
    s_mov_b32 s17, s15
    s_branch L_k2_wt_done""")
    a.label("L_k2_wt_w1")
    a(f"""s_sub_u32 s42, s2, 32
    s_lshr_b32 s43, s42, 3
    s_and_b32 s42, s42, 7
    s_mul_i32 s42, s42, 7
    s_add_u32 s42, s42, s30
    s_mul_i32 s53, s42, 14
    s_add_u32 s53, s53, s43
    s_add_u32 s53, s53, 224
    s_mov_b32 s52, 3584
    s_mul_i32 s51, s43, {32*3584}
    s_mov_b32 s54, 0
    s_mov_b32 s55, {F*D*2}
    s_waitcnt lgkmcnt(0)
    s_mov_b32 s16, s12
    s_mov_b32 s17, s13
    s_branch L_k2_wt_done""")
    a.label("L_k2_wt_wo")
    a(f"""s_lshr_b32 s43, s2, 1
    s_and_b32 s42, s2, 1
    s_mul_i32 s42, s42, 7
    s_add_u32 s42, s42, s30
    s_lshl_b32 s53, s42, 4
    s_add_u32 s53, s53, s43
    s_mov_b32 s52, 896
    s_mul_i32 s51, s43, {28*896}
    s_mov_b32 s54, -1
    s_mov_b32 s55, {D*D*2}
    s_waitcnt lgkmcnt(0)
    s_mov_b32 s16, s6
    s_mov_b32 s17, s7""")
    a.label("L_k2_wt_done")
    a(f"""s_lshl_b32 s42, s42, 6
    s_add_u32 s51, s51, s42
    s_lshl_b32 s53, s53, 11
    s_add_u32 s53, s53, {WS_WT}
    s_mov_b32 s18, s55
    s_mov_b32 s19, 0x00020000
    s_lshl_b32 s56, s52, 4
    s_add_u32 s56, s56, s51
    s_lshl_b32 s57, s30, 11
    s_add_u32 s57, s57, {K2_LDS_WT}
    v_lshrrev_b32 v5, 2, v0
    v_mul_u32_u24 v5, s52, v5
    v_and_b32 v6, 3, v0
    v_lshl_add_u32 v5, v6, 4, v5""")
    srd(a, 8, 4, WS_SIZE)
    QF, O, SB, P, KV, T = 8, 24, 56, 88, 104, 168
    VOFF = WS_V - WS_K

    def load_tile(slot, soff):
        r = KV + 16 * slot
        a(f"buffer_load_dwordx4 {vr(r)}, v1, s[8:11], {soff} offen")
        a(f"buffer_load_dwordx4 {vr(r+4)}, v1, s[8:11], {soff} offen offset:1024")
        a(f"buffer_load_dwordx4 {vr(r+8)}, v2, s[8:11], {soff} offen")
        a(f"buffer_load_dwordx4 {vr(r+12)}, v2, s[8:11], {soff} offen offset:1024")

    def qk(kreg, q, sreg):
        a(f"v_mfma_f32_32x32x16_bf16 {vr(sreg,16)}, {vr(kreg)}, {vr(QF+8*q)}, 0")
        a(f"v_mfma_f32_32x32x16_bf16 {vr(sreg,16)}, {vr(kreg+4)}, {vr(QF+8*q+4)}, {vr(sreg,16)}")

    def pv(vreg, q):
        a(f"v_mfma_f32_32x32x16_bf16 {vr(O+16*q,16)}, {vr(vreg)}, {vr(P+8*q)}, {vr(O+16*q,16)}")
        a(f"v_mfma_f32_32x32x16_bf16 {vr(O+16*q,16)}, {vr(vreg+4)}, {vr(P+8*q+4)}, {vr(O+16*q,16)}")

    def expcvt(q):
        s = SB + 16 * q
        for j in range(8):
            a(f"v_exp_f32 v{s+2*j}, v{s+2*j}")
            a(f"v_exp_f32 v{s+2*j+1}, v{s+2*j+1}")
            if j > 0:
                a(f"v_cvt_pk_bf16_f32 v{P+8*q+j-1}, v{s+2*j-2}, v{s+2*j-1}")
        a.nop(1)
        a(f"v_cvt_pk_bf16_f32 v{P+8*q+7}, v{s+14}, v{s+15}")

    def max16(s, dst, init=None):
        if init is None:
            a(f"v_max3_f32 v{dst}, v{s}, v{s+1}, v{s+2}")
            rest = list(range(3, 16))
        else:
            rest = list(range(0, 16))
        while rest:
            if len(rest) >= 2:
                a(f"v_max3_f32 v{dst}, v{dst}, v{s+rest[0]}, v{s+rest[1]}")
                rest = rest[2:]
            else:
                a(f"v_max_f32 v{dst}, v{dst}, v{s+rest[0]}")
                rest = rest[1:]

    def half_max(v, t):
        a(f"v_mov_b32 v{t}, v{v}")
        a.nop(2)
        a(f"v_permlane32_swap_b32 v{v}, v{t}")
        a.nop(1)
        a(f"v_max_f32 v{v}, v{v}, v{t}")

    def set_pad(q, mreg):
        a(f"v_cvt_pk_bf16_f32 v{T+8}, -v{mreg}, 0")
        a("s_mov_b32 exec_lo, 0")
        a(f"v_mov_b32 v{QF+8*q+6}, v{T+8}")
        a("s_mov_b32 exec_lo, -1")

    a(f"v_add_u32 v2, {VOFF}, v1")
    for q in range(2):
        a(f"buffer_load_dwordx4 {vr(QF+8*q)}, v1, s[8:11], s35 offen offset:{2048*q}")
        a(f"buffer_load_dwordx4 {vr(QF+8*q+4)}, v1, s[8:11], s35 offen offset:{2048*q+1024}")
    a(f"buffer_load_dwordx4 {vr(T+16)}, v1, s[8:11], s36 offen")
    a(f"buffer_load_dwordx4 {vr(T+20)}, v1, s[8:11], s36 offen offset:1024")
    a.label("L_k2_main")
    a("s_mov_b32 s38, s37")
    for t in range(4):
        a(f"s_add_u32 s39, s38, {2048*t}")
        load_tile(t, "s39")
    a("s_add_u32 s38, s38, 8192")
    a("s_cmp_lg_u32 s50, 0")
    a("s_cbranch_scc1 L_k2_havemax")
    a("""s_cmp_eq_u32 s30, 7
    s_cbranch_scc1 L_k2_nowt
    s_mov_b32 m0, s57
    s_nop 0
    buffer_load_dwordx4 v5, s[16:19], s51 offen lds
    s_add_u32 m0, s57, 1024
    s_nop 0
    buffer_load_dwordx4 v5, s[16:19], s56 offen lds
    s_waitcnt vmcnt(18)
    s_branch L_k2_wtj""")
    a.label("L_k2_nowt")
    a("s_waitcnt vmcnt(16)")
    a.label("L_k2_wtj")
    st()
    qk(T + 16, 0, SB)
    qk(T + 16, 1, SB + 16)
    a.nop(12)
    max16(SB, T)
    max16(SB + 16, T + 1)
    half_max(T, T + 2)
    half_max(T + 1, T + 2)
    set_pad(0, T)
    set_pad(1, T + 1)
    a.label("L_k2_havemax")
    for r in range(32):
        a(f"v_mov_b32 v{O+r}, 0")
    a("s_waitcnt vmcnt(14)")
    st()
    qk(KV, 0, SB)
    qk(KV, 1, SB + 16)
    a("s_mov_b32 s40, 0")
    a.nop(8)
    a.label("L_k2_loop")
    a("s_cmp_eq_u32 s40, 3")
    a("s_cselect_b32 s41, 0x7f000000, s38")
    for tt in range(4):
        nx = (tt + 1) % 4
        expcvt(0)
        a("s_waitcnt vmcnt(10)")
        qk(KV + 16 * nx, 0, SB)
        pv(KV + 16 * tt + 8, 0)
        expcvt(1)
        qk(KV + 16 * nx, 1, SB + 16)
        pv(KV + 16 * tt + 8, 1)
        a(f"s_add_u32 s39, s41, {2048*tt}")
        load_tile(tt, "s39")
    a("""s_add_u32 s38, s38, 8192
    s_add_u32 s40, s40, 1
    s_cmp_lt_u32 s40, 4
    s_cbranch_scc1 L_k2_loop""")
    st()
    a(f"""s_cmp_eq_u32 s30, 7
    s_cselect_b32 s42, 1, s50
    s_cmp_lg_u32 s42, 0
    s_cbranch_scc1 L_k2_nowt2
    v_and_b32 v3, 15, v0
    v_lshrrev_b32 v4, 2, v3
    v_and_b32 v3, 3, v3
    v_lshlrev_b32 v3, 3, v3
    v_lshl_add_u32 v3, v4, 6, v3
    v_lshrrev_b32 v4, 4, v0
    v_and_b32 v6, 1, v4
    v_lshl_add_u32 v3, v6, 5, v3
    v_lshrrev_b32 v4, 5, v0
    v_lshl_add_u32 v3, v4, 8, v3
    v_add_u32 v3, s57, v3
    s_waitcnt vmcnt(0)
    ds_read_b64_tr_b16 {vr(KV,2)}, v3
    ds_read_b64_tr_b16 {vr(KV+2,2)}, v3 offset:512
    ds_read_b64_tr_b16 {vr(KV+4,2)}, v3 offset:1024
    ds_read_b64_tr_b16 {vr(KV+6,2)}, v3 offset:1536
    s_mov_b32 exec_lo, 0
    s_mov_b32 exec_hi, s54
    s_waitcnt lgkmcnt(0)
    v_mov_b32 v{KV+6}, 0
    v_mov_b32 v{KV+7}, 0
    s_mov_b64 exec, -1
    buffer_store_dwordx4 {vr(KV)}, v1, s[8:11], s53 offen
    buffer_store_dwordx4 {vr(KV+4)}, v1, s[8:11], s53 offen offset:1024""")
    a.label("L_k2_nowt2")
    a.nop(12)
    a(f"v_mul_f32 v{T}, 0, v{O}")
    for r in range(1, 32):
        a(f"v_fma_f32 v{T}, v{O+r}, 0, v{T}")
    a(f"v_max_f32 v{T+1}, v{O+12}, v{O+28}")
    a(f"s_mov_b32 s42, {hex(f32bits(2.0**30))}")
    a(f"v_cmp_neq_f32 s[44:45], 0, v{T}")
    a(f"v_cmp_nlt_f32 s[46:47], v{T+1}, s42")
    a(f"v_cmp_u_f32 s[48:49], v{O+12}, v{O+28}")
    a.nop(2)
    a("""s_or_b32 s47, s47, s49
    s_or_b32 s44, s44, s45
    s_or_b32 s44, s44, s47
    s_cmp_lg_u32 s44, 0
    s_cselect_b32 s43, 1, 0""")
    a(f"""s_lshl_b32 s44, s30, 13
    v_add_u32 v3, s44, v1
    v_mov_b32 v{T}, s43
    s_lshl_b32 s45, s30, 2
    v_mov_b32 v{T+1}, s45""")
    for j in range(8):
        a(f"ds_write_b128 v3, {vr(O+4*j)} offset:{K2_LDS_RED+1024*j}")
    a(f"ds_write_b32 v{T+1}, v{T} offset:{K2_LDS_FLAG}")
    a("s_waitcnt vmcnt(0) lgkmcnt(0)")
    a("s_barrier")
    a(f"v_mov_b32 v{T+1}, 0")
    a(f"ds_read_b128 {vr(T+4)}, v{T+1} offset:{K2_LDS_FLAG}")
    a(f"ds_read_b128 {vr(T+8)}, v{T+1} offset:{K2_LDS_FLAG+16}")
    a(f"""s_lshl_b32 s44, s31, 13
    s_lshl_b32 s45, s32, 11
    s_add_u32 s44, s44, s45
    v_add_u32 v3, s44, v1""")
    a(f"""s_lshr_b32 s45, s32, 1
    s_lshl_b32 s45, s45, 12
    s_lshl_b32 s46, s31, 13
    s_add_u32 s45, s45, s46
    s_add_u32 s45, s45, {3*1024+512}
    v_and_b32 v4, 31, v0
    v_lshlrev_b32 v4, 4, v4
    v_add_u32 v4, s45, v4""")
    for k in range(4):
        a(f"ds_read_b128 {vr(SB+8*k)}, v3 offset:{K2_LDS_RED+16384*k}")
        a(f"ds_read_b128 {vr(SB+8*k+4)}, v3 offset:{K2_LDS_RED+16384*k+1024}")
        a(f"ds_read_b32 v{P+k}, v4 offset:{K2_LDS_RED+16384*k}")
    a("s_waitcnt lgkmcnt(12)")
    a(f"v_or3_b32 v{T+4}, v{T+4}, v{T+5}, v{T+6}")
    a(f"v_or3_b32 v{T+8}, v{T+8}, v{T+9}, v{T+10}")
    a(f"v_or3_b32 v{T+4}, v{T+4}, v{T+7}, v{T+11}")
    a(f"v_or_b32 v{T+4}, v{T+4}, v{T+8}")
    a.nop(1)
    a(f"v_readfirstlane_b32 s43, v{T+4}")
    a("s_waitcnt lgkmcnt(0)")
    a("""s_andn2_b32 s43, s43, s50
    s_cmp_lg_u32 s43, 0
    s_cbranch_scc1 L_k2_fallback""")
    for r in range(8):
        a(f"v_add_f32 v{SB+r}, v{SB+r}, v{SB+8+r}")
        a(f"v_add_f32 v{SB+16+r}, v{SB+16+r}, v{SB+24+r}")
    a(f"v_add_f32 v{P}, v{P}, v{P+1}")
    a(f"v_add_f32 v{P+2}, v{P+2}, v{P+3}")
    a(f"v_add_f32 v{P}, v{P}, v{P+2}")
    a(f"v_rcp_f32 v{P}, v{P}")
    for r in range(8):
        a(f"v_add_f32 v{SB+r}, v{SB+r}, v{SB+16+r}")
    for r in range(8):
        a(f"v_mul_f32 v{SB+r}, v{SB+r}, v{P}")
    for j in range(4):
        a(f"v_cvt_pk_bf16_f32 v{T+12+j}, v{SB+2*j}, v{SB+2*j+1}")
    a("""s_and_b32 s44, s32, 1
    s_cmp_eq_u32 s44, 1
    s_cselect_b32 s45, -1, 0
    s_mov_b32 exec_lo, 0
    s_mov_b32 exec_hi, s45""")
    a(f"v_mov_b32 v{T+14}, 0")
    a(f"v_mov_b32 v{T+15}, 0")
    a("s_mov_b64 exec, -1")
    a(f"""s_lshr_b32 s45, s32, 1
    s_add_u32 s45, s45, s33
    s_lshl_b32 s45, s45, 4
    s_add_u32 s45, s45, s28
    s_lshl_b32 s45, s45, 1
    s_add_u32 s45, s45, s44
    s_lshl_b32 s45, s45, 10
    s_add_u32 s45, s45, {WS_O}""")
    a(f"buffer_store_dwordx4 {vr(T+12)}, v1, s[8:11], s45 offen")
    if STAMP:
        a("s_waitcnt vmcnt(0)")
    st.dump(30, tmpv=3)
    a("s_endpgm")
    a.label("L_k2_fallback")
    a("s_mov_b32 exec_lo, 0")
    a(f"v_mov_b32 v{QF+6}, 0")
    a(f"v_mov_b32 v{QF+14}, 0")
    a("s_mov_b32 exec_lo, -1")
    a(f"v_mov_b32 v{T}, 0xff800000")
    a(f"v_mov_b32 v{T+1}, 0xff800000")
    a("s_mov_b32 s40, 0")
    a("s_mov_b32 s38, s37")
    a.label("L_k2_fbloop")
    a(f"buffer_load_dwordx4 {vr(T+16)}, v1, s[8:11], s38 offen")
    a(f"buffer_load_dwordx4 {vr(T+20)}, v1, s[8:11], s38 offen offset:1024")
    a("s_waitcnt vmcnt(0)")
    qk(T + 16, 0, SB)
    qk(T + 16, 1, SB + 16)
    a.nop(12)
    max16(SB, T, init=True)
    max16(SB + 16, T + 1, init=True)
    a("""s_add_u32 s38, s38, 2048
    s_add_u32 s40, s40, 1
    s_cmp_lt_u32 s40, 16
    s_cbranch_scc1 L_k2_fbloop""")
    half_max(T, T + 2)
    half_max(T + 1, T + 2)
    a(f"""v_and_b32 v4, 31, v0
    v_lshlrev_b32 v4, 2, v4
    s_lshl_b32 s44, s30, 8
    v_add_u32 v3, s44, v4
    ds_write_b32 v3, v{T} offset:{K2_LDS_MAX}
    ds_write_b32 v3, v{T+1} offset:{K2_LDS_MAX+128}
    s_waitcnt lgkmcnt(0)
    s_barrier
    s_lshl_b32 s44, s31, 8
    v_add_u32 v3, s44, v4""")
    for k in range(4):
        a(f"ds_read_b32 v{T+4+k}, v3 offset:{K2_LDS_MAX+512*k}")
        a(f"ds_read_b32 v{T+8+k}, v3 offset:{K2_LDS_MAX+512*k+128}")
    a("s_waitcnt lgkmcnt(0)")
    a(f"v_max3_f32 v{T}, v{T+4}, v{T+5}, v{T+6}")
    a(f"v_max3_f32 v{T+1}, v{T+8}, v{T+9}, v{T+10}")
    a(f"v_max_f32 v{T}, v{T}, v{T+7}")
    a(f"v_max_f32 v{T+1}, v{T+1}, v{T+11}")
    set_pad(0, T)
    set_pad(1, T + 1)
    a("s_mov_b32 s50, 1")
    a("s_barrier")
    a("s_branch L_k2_main")
    ktail(a, name)
    return name, kdesc(name, 192, 0), dict(grid=256, block=512, lds=K2_LDS)


KS_LDS = 4 * 3 * 4096


def gen_ksplit(a, which):
    k3 = which == "k3"
    name = "wo_kernel" if k3 else "ffn2_kernel"
    nwg = 224 + 14 if k3 else 224
    KT = 16 if k3 else 56
    NST = KT * 2 // 4
    R = 8 if k3 else 10
    WBASE = WS_WO if k3 else WS_W2
    XBASE = WS_O if k3 else WS_F
    khead(a, name, nwg)
    st = Stamps(a)
    st()
    a("s_load_dwordx2 s[4:5], s[0:1], 64")
    a(f"s_load_dwordx2 s[6:7], s[0:1], {0 if k3 else 48}")
    a("""v_lshrrev_b32 v1, 6, v0
    v_and_b32 v0, 63, v0""")
    a("v_readfirstlane_b32 s30, v1")
    a("v_lshlrev_b32 v1, 4, v0")
    if k3:
        a("s_cmp_ge_u32 s2, 224")
        a("s_cbranch_scc1 L_k3_colsum")
    a("""s_and_b32 s26, s2, 7
    s_lshr_b32 s27, s2, 3
    s_lshl_b32 s28, s26, 2
    s_and_b32 s29, s27, 3
    s_add_u32 s28, s28, s29
    s_lshr_b32 s29, s27, 2""")
    a(f"""s_lshr_b32 s31, s30, 1
    s_and_b32 s32, s30, 1
    s_lshl_b32 s33, s29, 1
    s_add_u32 s34, s33, s31
    s_xor_b32 s35, s34, 1
    s_lshl_b32 s33, s28, 1
    s_add_u32 s36, s33, s32
    s_xor_b32 s37, s36, 1
    s_mul_i32 s38, s30, {NST*1024}""")
    for d, t, base in ((40, 34, WBASE), (41, 35, WBASE), (42, 36, XBASE), (43, 37, XBASE)):
        a(f"""s_mul_i32 s{d}, s{t}, {KT*2048}
        s_add_u32 s{d}, s{d}, s38
        s_add_u32 s{d}, s{d}, {base}""")
    RES = 8
    FR = 16
    ACC = FR + R * 16
    T = ACC + 64
    nv = T + 16
    a("v_and_b32 v2, 31, v0")
    a("v_lshrrev_b32 v3, 5, v0")
    if k3:
        a(f"""s_lshl_b32 s44, s36, 5
        v_add_u32 v4, s44, v2
        v_mul_u32_u24 v4, 896, v4
        v_lshl_add_u32 v4, v3, 3, v4
        s_lshl_b32 s45, s34, 6""")
    else:
        a(f"""s_mul_i32 s45, s36, 14
        s_add_u32 s45, s45, s34
        s_lshl_b32 s45, s45, 11
        s_add_u32 s45, s45, {WS_H}""")
    a("s_waitcnt lgkmcnt(0)")
    srd(a, 8, 4, WS_SIZE)
    srd(a, 12, 6, S * D * 2)
    if k3:
        for q in range(4):
            a(f"buffer_load_dwordx2 {vr(RES+2*q,2)}, v4, s[12:15], s45 offen offset:{16*q}")
        NRES = 4
    else:
        a(f"buffer_load_dwordx4 {vr(RES)}, v1, s[8:11], s45 offen")
        a(f"buffer_load_dwordx4 {vr(RES+4)}, v1, s[8:11], s45 offen offset:1024")
        NRES = 2

    def load(step):
        slot = step % R
        r = FR + 16 * slot
        if step % 4 == 0 and step > 0:
            for d in (40, 41, 42, 43):
                a(f"s_add_u32 s{d}, s{d}, 4096")
        off = (step % 4) * 1024
        for i, d in enumerate((40, 42, 41, 43)):
            a(f"buffer_load_dwordx4 {vr(r+4*i)}, v1, s[8:11], s{d} offen offset:{off}")

    for stp in range(min(R, NST)):
        load(stp)
    st()
    a(f"s_waitcnt vmcnt({4*min(R,NST)})")
    for j in range(8):
        a(f"v_lshlrev_b32 v{ACC+2*j}, 16, v{RES+j}")
        a(f"v_and_b32 v{ACC+2*j+1}, 0xffff0000, v{RES+j}")
    issued = min(R, NST)
    for stp in range(NST):
        r = FR + 16 * (stp % R)
        A0, B0, A1, B1 = vr(r), vr(r + 4), vr(r + 8), vr(r + 12)
        rem = issued - stp - 1
        a(f"s_waitcnt vmcnt({4*rem+2})")
        c = lambda j: vr(ACC + 16 * j, 16) if (stp > 0 or j == 0) else "0"
        a(f"v_mfma_f32_32x32x16_bf16 {vr(ACC,16)}, {A0}, {B0}, {c(0)}")
        a(f"s_waitcnt vmcnt({4*rem+1})")
        a(f"v_mfma_f32_32x32x16_bf16 {vr(ACC+32,16)}, {A1}, {B0}, {c(2)}")
        a(f"s_waitcnt vmcnt({4*rem})")
        a(f"v_mfma_f32_32x32x16_bf16 {vr(ACC+16,16)}, {A0}, {B1}, {c(1)}")
        a(f"v_mfma_f32_32x32x16_bf16 {vr(ACC+48,16)}, {A1}, {B1}, {c(3)}")
        if issued < NST:
            load(issued)
            issued += 1
    st()
    for j in (2, 1, 3):
        a(f"""s_xor_b32 s46, s30, {j}
        s_mul_i32 s46, s46, 12288
        s_add_u32 s46, s46, {(j-1)*4096}
        v_add_u32 v{4+j}, s46, v1""")
    a("s_mul_i32 s46, s30, 12288")
    a("v_add_u32 v4, s46, v1")
    a.nop(4)
    for j in (2, 1, 3):
        if j == 3:
            a.nop(4)
        for q in range(4):
            a(f"ds_write_b128 v{4+j}, {vr(ACC+16*j+4*q)} offset:{1024*q}")
    a("s_waitcnt lgkmcnt(0)")
    a("s_barrier")
    for j in range(3):
        for q in range(4):
            a(f"ds_read_b128 {vr(FR+16*j+4*q)}, v4 offset:{4096*j+1024*q}")
    a("s_waitcnt lgkmcnt(4)")
    for r in range(16):
        a(f"v_add_f32 v{FR+r}, v{FR+r}, v{FR+16+r}")
    a("s_waitcnt lgkmcnt(0)")
    for r in range(16):
        a(f"v_add_f32 v{ACC+r}, v{ACC+r}, v{FR+32+r}")
    for r in range(16):
        a(f"v_add_f32 v{ACC+r}, v{ACC+r}, v{FR+r}")
    OUT = T
    for j in range(8):
        a(f"v_cvt_pk_bf16_f32 v{OUT+j}, v{ACC+2*j}, v{ACC+2*j+1}")
    if k3:
        a(f"""s_mul_i32 s45, s36, 14
        s_add_u32 s45, s45, s34
        s_lshl_b32 s45, s45, 11
        s_add_u32 s45, s45, {WS_H}""")
        a(f"buffer_store_dwordx4 {vr(OUT)}, v1, s[8:11], s45 offen")
        a(f"buffer_store_dwordx4 {vr(OUT+4)}, v1, s[8:11], s45 offen offset:1024")
        S0, Q0, S1, Q1, ON = T + 8, T + 9, T + 10, T + 11, T + 12
        a(f"v_mov_b32 v{ON}, 0x3f803f80")
        for r in (S0, Q0, S1, Q1):
            a(f"v_mov_b32 v{r}, 0")
        for j in range(8):
            a(f"v_dot2c_f32_bf16 v{S0 if j%2==0 else S1}, v{OUT+j}, v{ON}")
            a(f"v_dot2c_f32_bf16 v{Q0 if j%2==0 else Q1}, v{OUT+j}, v{OUT+j}")
        a.nop(3)
        a(f"v_add_f32 v{S0}, v{S0}, v{S1}")
        a(f"v_add_f32 v{Q0}, v{Q0}, v{Q1}")
        half_sum(a, S0, S1)
        half_sum(a, Q0, Q1)
        a(f"""s_lshl_b32 s45, s34, 11
        s_lshl_b32 s46, s36, 5
        s_add_u32 s45, s45, s46
        s_lshl_b32 s45, s45, 3
        s_add_u32 s45, s45, {WS_ST}
        v_lshlrev_b32 v4, 3, v2
        s_mov_b32 exec_hi, 0""")
        a(f"buffer_store_dwordx2 {vr(S0,2)}, v4, s[8:11], s45 offen")
        a("s_mov_b32 exec_hi, -1")
    else:
        a.nop(2)
        for p in range(2):
            a(f"v_permlane32_swap_b32 v{OUT+4*p}, v{OUT+4*p+2}")
            a(f"v_permlane32_swap_b32 v{OUT+4*p+1}, v{OUT+4*p+3}")
        a(f"""s_lshl_b32 s44, s36, 5
        v_add_u32 v4, s44, v2
        v_mul_u32_u24 v4, 896, v4
        v_lshl_add_u32 v4, v3, 4, v4
        s_lshl_b32 s45, s34, 6""")
        a(f"buffer_store_dwordx4 {vr(OUT)}, v4, s[12:15], s45 offen")
        a(f"buffer_store_dwordx4 {vr(OUT+4)}, v4, s[12:15], s45 offen offset:32")
    if STAMP:
        a("s_waitcnt vmcnt(0)")
    st.dump(30, tmpv=4)
    a("s_endpgm")
    if k3:
        a.label("L_k3_colsum")
        a(f"""s_sub_u32 s26, s2, 224
        s_lshl_b32 s26, s26, 2
        s_add_u32 s26, s26, s30
        s_mul_i32 s40, s26, {28*1024}
        s_add_u32 s40, s40, {WS_W1}
        s_waitcnt lgkmcnt(0)""")
        srd(a, 8, 4, WS_SIZE)
        for i in range(28):
            if i % 4 == 0 and i > 0:
                a("s_add_u32 s40, s40, 4096")
            a(f"buffer_load_dwordx4 {vr(16+4*i)}, v1, s[8:11], s40 offen offset:{(i%4)*1024}")
        for j in range(4):
            a(f"v_mov_b32 v{8+j}, 0x3f803f80")
        CA = 128
        for i in range(28):
            a(f"s_waitcnt vmcnt({27-i})")
            a(f"v_mfma_f32_32x32x16_bf16 {vr(CA,16)}, {vr(16+4*i)}, {vr(8)}, {vr(CA,16) if i else '0'}")
        a(f"""s_lshl_b32 s45, s26, 7
        s_add_u32 s45, s45, {WS_CS}
        v_lshrrev_b32 v3, 5, v0
        v_lshlrev_b32 v4, 4, v3
        s_mov_b32 exec_lo, 1
        s_mov_b32 exec_hi, 1""")
        a.nop(12)
        for q in range(4):
            a(f"buffer_store_dwordx4 {vr(CA+4*q)}, v4, s[8:11], s45 offen offset:{32*q}")
        a("s_endpgm")
    ktail(a, name)
    assert nv <= 256
    return name, kdesc(name, nv, 0), dict(grid=nwg, block=256, lds=KS_LDS)


def gen_k3(a):
    return gen_ksplit(a, "k3")


def gen_k5(a):
    return gen_ksplit(a, "k5")


K4_LDS_ST = 0
K4_LDS_H = 1024
K4_LDS = K4_LDS_H + 112 * 1024


def gen_k4(a):
    name = "ffn1_kernel"
    khead(a, name, 224)
    st = Stamps(a)
    st()
    a("s_load_dwordx2 s[4:5], s[0:1], 64")
    a("""v_lshrrev_b32 v1, 6, v0
    v_and_b32 v0, 63, v0""")
    a("v_readfirstlane_b32 s30, v1")
    a("v_lshlrev_b32 v1, 4, v0")
    a("""s_and_b32 s26, s2, 7
    s_lshr_b32 s27, s2, 3
    s_lshl_b32 s28, s26, 1
    s_and_b32 s29, s27, 1
    s_add_u32 s28, s28, s29
    s_lshr_b32 s29, s27, 1""")
    a(f"""s_lshl_b32 s31, s29, 2
    s_add_u32 s31, s31, s30
    s_lshl_b32 s32, s28, 2
    s_add_u32 s33, s32, s30
    s_mul_i32 s40, s31, {28*1024}
    s_add_u32 s40, s40, {WS_W1}
    s_mul_i32 s41, s33, {28*1024}
    s_add_u32 s41, s41, {WS_H}
    s_mul_i32 s42, s30, {28*1024}
    s_add_u32 s42, s42, {K4_LDS_H}""")
    a("""v_and_b32 v2, 31, v0
    v_lshrrev_b32 v3, 5, v0""")
    a(f"""v_mul_u32_u24 v4, {7*2048*8}, v3
    v_lshl_add_u32 v4, v2, 3, v4
    s_lshl_b32 s43, s33, 8
    s_add_u32 s43, s43, {WS_ST}
    s_lshl_b32 s44, s31, 7
    s_add_u32 s44, s44, {WS_CS}
    v_lshlrev_b32 v5, 4, v3""")
    a("s_waitcnt lgkmcnt(0)")
    srd(a, 8, 4, WS_SIZE)
    WF = 16
    HB = 128
    ACC = 160
    CS = 224
    T = 240
    STR = HB
    for i in range(7):
        a(f"buffer_load_dwordx2 {vr(STR+2*i,2)}, v4, s[8:11], s43 offen")
        if i < 6:
            a(f"s_add_u32 s43, s43, {2048*8}")
    for q in range(4):
        a(f"buffer_load_dwordx4 {vr(CS+4*q)}, v5, s[8:11], s44 offen offset:{32*q}")
    for c in range(7):
        a(f"s_add_u32 m0, s42, {c*4096}")
        for i in range(4):
            a(f"buffer_load_dwordx4 {vr(WF+16*c+4*i)}, v1, s[8:11], s40 offen offset:{1024*i}")
            a(f"buffer_load_dwordx4 v1, s[8:11], s41 offen offset:{1024*i} lds")
        if c < 6:
            a("s_add_u32 s40, s40, 4096")
            a("s_add_u32 s41, s41, 4096")
    st()
    a("s_waitcnt vmcnt(60)")
    for i in range(1, 7):
        a(f"v_add_f32 v{STR}, v{STR}, v{STR+2*i}")
        a(f"v_add_f32 v{STR+1}, v{STR+1}, v{STR+2*i+1}")
    half_sum(a, STR, T)
    half_sum(a, STR + 1, T)
    a(f"v_mul_f32 v{STR}, {hex(f32bits(1.0/D))}, v{STR}")
    a(f"v_mul_f32 v{STR+1}, {hex(f32bits(1.0/D))}, v{STR+1}")
    a(f"v_fma_f32 v{STR+1}, -v{STR}, v{STR}, v{STR+1}")
    a(f"v_max_f32 v{STR+1}, 0, v{STR+1}")
    bf16_round(a, STR, T)
    bf16_round(a, STR + 1, T)
    a(f"v_add_f32 v{STR+1}, {hex(f32bits(1e-5))}, v{STR+1}")
    bf16_round(a, STR + 1, T)
    a(f"v_sqrt_f32 v{STR+1}, v{STR+1}")
    a.nop(1)
    bf16_round(a, STR + 1, T)
    a(f"""s_lshl_b32 s45, s30, 8
    v_lshlrev_b32 v6, 3, v2
    v_add_u32 v7, s45, v6
    ds_write_b64 v7, {vr(STR,2)} offset:{K4_LDS_ST}""")
    a("v_add_u32 v8, 57344, v1")

    def hread(step, buf):
        for mi in range(4):
            base = 1 if mi < 2 else 8
            off = K4_LDS_H + (mi & 1) * 28672 + step * 1024
            a(f"ds_read_b128 {vr(HB+16*buf+4*mi)}, v{base} offset:{off}")

    def chunk_wait(c):
        a(f"s_waitcnt vmcnt({(6-c)*8}) lgkmcnt(0)" if c == 0 else f"s_waitcnt vmcnt({(6-c)*8})")
        a("s_barrier")

    chunk_wait(0)
    st()
    hread(0, 0)
    for step in range(28):
        buf = step & 1
        nxt = step + 1
        if nxt < 28:
            if nxt % 4 == 0:
                chunk_wait(nxt // 4)
            hread(nxt, buf ^ 1)
        for mi in range(4):
            a(f"s_waitcnt lgkmcnt({(4 if nxt < 28 else 0) + 3 - mi})")
            acc = vr(ACC + 16 * mi, 16)
            a(f"v_mfma_f32_32x32x16_bf16 {acc}, {vr(WF+4*step)}, {vr(HB+16*buf+4*mi)}, {acc if step else '0'}")
    st()
    MS = WF
    for mi in range(4):
        a(f"ds_read_b64 {vr(MS+2*mi,2)}, v6 offset:{K4_LDS_ST+256*mi}")
    a(f"""s_mul_i32 s45, s32, 56
    s_add_u32 s45, s45, s31
    s_lshl_b32 s45, s45, 11
    s_add_u32 s45, s45, {WS_F}""")
    a("s_waitcnt lgkmcnt(0)")
    for mi in range(4):
        a(f"v_rcp_f32 v{MS+8+mi}, v{MS+2*mi+1}")
    a.nop(1)
    for mi in range(4):
        a(f"v_mul_f32 v{MS+8+mi}, {hex(f32bits(-math.log2(math.e)))}, v{MS+8+mi}")
    E = WF + 16
    for mi in range(4):
        acc = ACC + 16 * mi
        mean, sd, c2 = MS + 2 * mi, MS + 2 * mi + 1, MS + 8 + mi
        OUT = WF + 32 + 8 * mi
        for r in range(16):
            a(f"v_fma_f32 v{acc+r}, -v{mean}, v{CS+r}, v{acc+r}")
            a(f"v_mul_f32 v{E+r}, v{c2}, v{acc+r}")
        for r in range(16):
            a(f"v_exp_f32 v{E+r}, v{E+r}")
        for r in range(16):
            a(f"v_fma_f32 v{E+r}, v{E+r}, v{sd}, v{sd}")
        for r in range(16):
            a(f"v_rcp_f32 v{E+r}, v{E+r}")
        for r in range(16):
            a(f"v_mul_f32 v{acc+r}, v{acc+r}, v{E+r}")
        for j in range(8):
            a(f"v_cvt_pk_bf16_f32 v{OUT+j}, v{acc+2*j}, v{acc+2*j+1}")
        a(f"buffer_store_dwordx4 {vr(OUT)}, v1, s[8:11], s45 offen")
        a(f"buffer_store_dwordx4 {vr(OUT+4)}, v1, s[8:11], s45 offen offset:1024")
        if mi < 3:
            a(f"s_add_u32 s45, s45, {56*2048}")
    if STAMP:
        a("s_waitcnt vmcnt(0)")
    st.dump(30, tmpv=4)
    ktail(a, name)
    return name, kdesc(name, 256, 0), dict(grid=224, block=256, lds=K4_LDS)


def main():
    global STAMP, STAMP_WG
    if "--stamp" in sys.argv:
        i = sys.argv.index("--stamp")
        STAMP = True
        STAMP_WG = int(sys.argv[i+1])
        del sys.argv[i:i+2]
    a = Asm()
    kernels = []
    for g in (gen_k1, gen_k2, gen_k3, gen_k4, gen_k5):
        kernels.append(g(a))
    a.label("L_code_end")
    hdr = []
    for name, _, l in kernels:
        hdr.append(f"; @launch kernel={name} grid=({l['grid']},1,1) block=({l['block']},1,1) lds={l['lds']}")
    hdr.append('.amdgcn_target "amdgcn-amd-amdhsa--gfx950"')
    hdr.append(".text")
    txt = "\n".join(hdr) + "\n" + a.text() + '.section .rodata,"a"\n' + "".join(d for _, d, _ in kernels)
    out = sys.argv[1] if len(sys.argv) > 1 else "k.s"
    open(out, "w").write(txt)


if __name__ == "__main__":
    main()
```
